```python
import torch

def _softmax(x, axis=-1):
    return torch.softmax(x, dim=axis)
def _gelu(x):
    return torch.nn.functional.gelu(x, approximate="tanh")
def _silu(x):
    return torch.nn.functional.silu(x)
def _sigmoid(x):
    return torch.sigmoid(x)
def _layernorm(x, axis=-1, eps=1e-5):
    m = x.mean(dim=axis, keepdim=True)
    v = x.var(dim=axis, keepdim=True, unbiased=False)
    return (x - m) / torch.sqrt(v + eps)
def _scatter_add(tgt, idx, src, axis=0):
    return tgt.clone().index_add_(axis, idx, src)
def _segment_sum(src, seg, n):
    out = torch.zeros((n,) + src.shape[1:], dtype=src.dtype)
    return out.index_add_(0, seg, src)
def _pad(x, pw):
    flat = tuple(v for pair in reversed(pw) for v in pair)
    return torch.nn.functional.pad(x, flat)

kernel_name = 'sequential_preLN__ssm_conv_s4d__glu_gated_swiglu__prompt'

def setup_inputs():

    _w = (lambda a: (lambda t: t.to(torch.bfloat16) if t.is_floating_point() else t)(torch.as_tensor(a)))
    def _A_setup():
        Bsz, L, D, N = 1, 2048, 512, 128
        return {
            "u": _w((lambda *s: torch.randn(*s, dtype=torch.bfloat16) * 0.05)(Bsz, L, D)),
            "log_A_real": _w((lambda *s: torch.randn(*s, dtype=torch.bfloat16) * 6.4)(D, N) * 0.5),
            "A_imag": _w((lambda *s: torch.randn(*s, dtype=torch.bfloat16) * 0.05)(D, N) * 3.14),
            "C_real": _w((lambda *s: torch.randn(*s, dtype=torch.bfloat16) * 0.05)(D, N) / N ** 0.5),
            "C_imag": _w((lambda *s: torch.randn(*s, dtype=torch.bfloat16) * 0.05)(D, N) / N ** 0.5),
            "log_dt": _w((lambda *s: torch.randn(*s, dtype=torch.bfloat16) * 0.05)(D) * 0.5 - 4.0),
            "D_skip": _w((lambda *s: torch.randn(*s, dtype=torch.bfloat16) * 0.05)(D)),
        }
    _A_in = _A_setup()

    def _B_setup():
        B, S, D, F = 1, 2048, 512, 1792
        return {
            "x": _w((lambda *s: torch.randn(*s, dtype=torch.bfloat16) * 0.05)(B, S, D)),
            "w1": _w((lambda *s: torch.randn(*s, dtype=torch.bfloat16) * 0.4)(D, F) * (2.0 / D) ** 0.5),
            "w3": _w((lambda *s: torch.randn(*s, dtype=torch.bfloat16) * 0.4)(D, F) * (2.0 / D) ** 0.5),
            "w2": _w((lambda *s: torch.randn(*s, dtype=torch.bfloat16) * 0.4)(F, D) * (2.0 / F) ** 0.5),
        }
    _B_in = _B_setup()

    return {
        "A_u": _A_in["u"],
        "A_log_A_real": _A_in["log_A_real"],
        "A_A_imag": _A_in["A_imag"],
        "A_C_real": _A_in["C_real"],
        "A_C_imag": _A_in["C_imag"],
        "A_log_dt": _A_in["log_dt"],
        "A_D_skip": _A_in["D_skip"],
        "B_x": _B_in["x"],
        "B_w1": _B_in["w1"],
        "B_w3": _B_in["w3"],
        "B_w2": _B_in["w2"],
    }

def reference(A_u, A_log_A_real, A_A_imag, A_C_real, A_C_imag, A_log_dt, A_D_skip, B_x, B_w1, B_w3, B_w2):
    def _A_ref(u, log_A_real, A_imag, C_real, C_imag, log_dt, D_skip):
        L = u.shape[1]
        dt = torch.exp(log_dt)
        A = -torch.exp(log_A_real) + 1j * A_imag
        C = (C_real + 1j * C_imag) * dt[:, None]
        pos = (lambda x, dt: x.to(dt))(torch.arange(L), log_dt.dtype)
        P = torch.exp((A * dt[:, None])[:, :, None] * pos[None, None, :])
        K = 2.0 * torch.einsum("dn,dnl->dl", C, P).real
        L2 = 2 * L
        u_t = (lambda x, *d: x.permute(*d))(u, 0, 2, 1)
        Kf = (lambda x, *a, **k: torch.fft.rfft(x.float(), *a, **k))(K, L2)
        Uf = (lambda x, *a, **k: torch.fft.rfft(x.float(), *a, **k))(u_t, L2)
        y = (lambda x, *a, **k: torch.fft.irfft(x, *a, **k).to(torch.bfloat16))(Uf * Kf[None, :, :], L2)[:, :, :L]
        y = (lambda x, *d: x.permute(*d))(y, 0, 2, 1)
        return y + u * D_skip[None, None, :]

    def _B_ref(x, w1, w3, w2):
        gate = torch.einsum("bsd,df->bsf", x, w1)
        up = torch.einsum("bsd,df->bsf", x, w3)
        h = _silu(gate) * up
        out = torch.einsum("bsf,fd->bsd", h, w2)
        return out

    x = A_u
    h = x + _A_ref(_layernorm(x, axis=-1), A_log_A_real, A_A_imag, A_C_real, A_C_imag, A_log_dt, A_D_skip)
    h2 = h + _B_ref(_layernorm(h, axis=-1), B_w1, B_w3, B_w2)
    return h2
```

```python
import re

TRANS = ("v_exp_f32", "v_log_f32", "v_rcp_f32", "v_rsq_f32", "v_sqrt_f32", "v_sin_f32", "v_cos_f32", "v_rcp_iflag_f32")

def v(i, n=1):
    return f"v{i}" if n == 1 else f"v[{i}:{i+n-1}]"
def a(i, n=1):
    return f"a{i}" if n == 1 else f"a[{i}:{i+n-1}]"
def s(i, n=1):
    return f"s{i}" if n == 1 else f"s[{i}:{i+n-1}]"
def r(i, n=1):
    if i < 256:
        assert i + n <= 256
        return v(i, n)
    return a(i - 256, n)

_REG = re.compile(r"^(-?)(?:abs\()?\|?([vas])(?:(\d+)|\[(\d+):(\d+)\])\)?\|?$")

def regs_of(op):
    op = op.strip()
    if op in ("vcc", "vcc_lo", "vcc_hi"): return {("s", "vcc")}
    if op in ("exec", "exec_lo", "exec_hi"): return {("s", "exec")}
    if op == "m0": return {("s", "m0")}
    m = _REG.match(op)
    if not m: return set()
    k = m.group(2)
    if m.group(3) is not None: lo = hi = int(m.group(3))
    else: lo, hi = int(m.group(4)), int(m.group(5))
    return {(k, i) for i in range(lo, hi + 1)}

class Ins:
    __slots__ = ("text", "op", "kind", "wr", "rd", "srcc", "srcab", "passes", "dpp", "states", "wide", "data")
    def __init__(self, text):
        self.text = text
        t = text.split(";")[0].strip()
        parts = t.split(None, 1)
        self.op = op = parts[0]
        rest = parts[1] if len(parts) > 1 else ""
        ops = [x.strip() for x in re.split(r",(?![^\[]*\])", rest)] if rest else []
        if ops:
            last = ops[-1].split()
            mods = " ".join(last[1:]) if len(last) > 1 else ""
            ops[-1] = last[0] if last else ""
        else:
            mods = ""
        self.wr, self.rd, self.srcc, self.srcab = set(), set(), set(), set()
        self.passes = 0; self.dpp = False; self.states = 1; self.wide = False; self.data = set()
        R = [regs_of(x) for x in ops]
        if op == "s_nop":
            self.kind = "nop"; self.states = int(ops[0], 0) + 1
        elif op.startswith("v_mfma"):
            self.kind = "mfma"
            self.wr = R[0]; self.srcab = R[1] | R[2]; self.srcc = R[3]; self.rd = self.srcab | self.srcc
            self.passes = 8 if "32x32x16" in op else 4 if "16x16x32" in op else 16
        elif op.startswith("v_"):
            self.kind = "trans" if any(op.startswith(x) for x in TRANS) else "valu"
            if op.startswith("v_dot"): self.kind = "dot"
            self.dpp = "_dpp" in op or "row_" in mods or "quad_perm" in mods or "wave_" in mods
            if op.startswith("v_permlane") and "swap" in op:
                self.wr = R[0] | R[1]; self.rd = R[0] | R[1]
            elif op.startswith(("v_add_co", "v_sub_co", "v_addc_co", "v_subb_co", "v_mad_u64", "v_div_scale")):
                self.wr = R[0] | R[1]
                for x in R[2:]: self.rd |= x
            else:
                self.wr = set(R[0])
                for x in R[1:]: self.rd |= x
                if op.startswith(("v_fmac", "v_dot2c", "v_pk_fmac", "v_writelane")) or self.dpp or "_sdwa" in op: self.rd |= R[0]
                if op.startswith("v_cndmask") and len(ops) == 3: self.rd |= {("s", "vcc")}
        elif op.startswith("ds_"):
            self.kind = "ds"
            if op.startswith(("ds_read", "ds_bpermute", "ds_permute", "ds_swizzle")):
                self.wr = set(R[0])
                for x in R[1:]: self.rd |= x
                if "d16" in op: self.rd |= R[0]
            else:
                for x in R: self.rd |= x
        elif op.startswith(("global_", "buffer_", "flat_")):
            self.kind = "vmem"
            lds = " lds" in (" " + mods) or "_lds_" in op
            if lds:
                for x in R: self.rd |= x
                self.rd |= {("s", "m0")}; self.kind = "dma"
            elif "load" in op:
                self.wr = set(R[0])
                for x in R[1:]: self.rd |= x
            elif "atomic" in op and "sc0" in mods:
                if op.startswith("global_"):
                    self.wr = set(R[0])
                    for x in R[1:]: self.rd |= x
                else:
                    self.wr = set(R[0])
                    for x in R: self.rd |= x
            else:
                for x in R: self.rd |= x
                if "x4" in op or "x3" in op:
                    self.wide = True
                    self.data = R[1] if op.startswith("global_") else R[0]
        elif op.startswith("s_"):
            self.kind = "salu"
            if op.startswith(("s_cmp", "s_cbranch", "s_branch", "s_waitcnt", "s_barrier", "s_endpgm", "s_sleep", "s_setprio", "s_bitcmp")):
                for x in R: self.rd |= x
            else:
                if R: self.wr = set(R[0])
                for x in R[1:]: self.rd |= x
                if "saveexec" in op: self.wr |= {("s", "exec")}
        else:
            raise ValueError("unknown instr " + text)

def isv(rs): return {x for x in rs if x[0] in "va"}
def iss(rs): return {x for x in rs if x[0] == "s"}

def need(prev, cur):
    n = 0
    pk, ck = prev.kind, cur.kind
    pvalu = pk in ("valu", "trans", "dot")
    cvalu = ck in ("valu", "trans", "dot")
    if pvalu:
        w = isv(prev.wr)
        if ck == "mfma" and w & cur.rd: n = max(n, 3 if pk == "dot" else 2)
        if cvalu:
            if pk == "trans" and ck != "trans" and w & cur.rd: n = max(n, 1)
            if pk == "trans" and ck == "trans" and w & cur.rd: n = max(n, 1)
            if cur.dpp and w & cur.rd: n = max(n, 2)
            if cur.op.startswith("v_permlane") and w & cur.rd: n = max(n, 2)
            if cur.op.startswith(("v_readlane", "v_readfirstlane")) and w & cur.rd: n = max(n, 1)
            if "_sdwa" in prev.op and "dst_sel:DWORD" not in prev.text and w & (cur.rd | cur.wr): n = max(n, 1)
            if "op_sel" in prev.text and not prev.op.startswith("v_pk") and w & (cur.rd | cur.wr): n = max(n, 1)
        if pk == "dot":
            if ck == "dot" and cur.op == prev.op:
                t = cur.text.split(";")[0]
                ops = [x.strip() for x in re.split(r",(?![^\[]*\])", t.split(None, 1)[1])]
                ab = regs_of(ops[1]) | regs_of(ops[2].split()[0])
                if w & ab: n = max(n, 3)
            elif w & (cur.rd | cur.wr): n = max(n, 3)
        sw = iss(prev.wr)
        if sw:
            if cvalu and sw & cur.rd:
                n = max(n, 4 if cur.op.startswith(("v_readlane", "v_writelane")) else 2)
            if ck in ("vmem", "dma") and sw & cur.rd: n = max(n, 5)
            if ck == "salu" and sw & cur.rd: n = max(n, 1)
            if ("s", "exec") in sw: n = max(n, 5)
    if pk == "mfma":
        p = prev.passes
        big = {4: 8, 8: 12, 16: 20}[p]
        d = prev.wr
        if ck == "mfma":
            if d & cur.srcab: n = max(n, big)
            if d & cur.srcc and not (cur.srcc == d and cur.passes == p): n = max(n, {4: 6, 8: 10, 16: 18}[p])
            if d & cur.wr and not (cur.wr == d and cur.passes == p): n = max(n, big)
        elif d & (cur.rd | cur.wr): n = max(n, big)
        if cvalu and prev.srcc & cur.wr: n = max(n, {4: 3, 8: 7, 16: 15}[p])
    if pk == "salu" and ("s", "m0") in prev.wr and ck == "dma": n = max(n, 1)
    if prev.wide and prev.data & cur.wr: n = max(n, 2 if cvalu else 1)
    return n

class Asm:
    def __init__(self):
        self.lines = []
    def __call__(self, text):
        for l in text.split("\n"):
            l = l.strip()
            if l: self.lines.append(l)
    def c(self, text): self.lines.append("; " + text)
    def finish(self):
        out = []; hist = []
        nins = 0
        for l in self.lines:
            t = l.split(";")[0].strip()
            if not t or t.startswith(".") or t.endswith(":"):
                out.append(l); continue
            cur = Ins(l)
            dist = 0; req = 0
            for p in reversed(hist):
                k = need(p, cur) - dist
                if k > req: req = k
                dist += p.states
                if dist >= 20: break
            while req > 0:
                k = min(req, 16)
                out.append(f"s_nop {k-1}"); hist.append(Ins(f"s_nop {k-1}")); req -= k; nins += 1
            out.append(l); hist.append(cur)
            if len(hist) > 40: hist = hist[-40:]
        return out

def kernel_header(name):
    return f".globl {name}\n.p2align 8\n.type {name},@function\n{name}:"

def kernel_desc(name, vgpr, sgpr, accum):
    return f""".section .rodata,"a"
.p2align 6
.amdhsa_kernel {name}
  .amdhsa_next_free_vgpr {vgpr}
  .amdhsa_next_free_sgpr {sgpr}
  .amdhsa_accum_offset {accum}
  .amdhsa_group_segment_fixed_size 0
  .amdhsa_kernarg_size 112
  .amdhsa_user_sgpr_count 2
  .amdhsa_user_sgpr_kernarg_segment_ptr 1
  .amdhsa_system_sgpr_workgroup_id_x 1
.end_amdhsa_kernel
.text"""
```

```python
from asmlib import *
from layout import *

def stamp(A, on, slot, sreg=70):
    if on == "cyc": A(f"s_memtime s[{sreg+2*slot}:{sreg+2*slot+1}]")
    elif on: A(f"s_memrealtime s[{sreg+2*slot}:{sreg+2*slot+1}]")

def stamp_flush(A, on, kid, nslots, ws, vtmp, sreg=70, wave_sreg=None):
    if not on: return
    A("s_waitcnt lgkmcnt(0)")
    A(f"s_lshl_b32 s69, s2, 6")
    A(f"s_add_u32 s69, s69, {STAMP_OFF + kid * 16384}")
    if wave_sreg is not None:
        A(f"s_lshr_b32 s68, s{wave_sreg}, 2")
        A(f"s_lshl_b32 s68, s68, 14")
        A(f"s_add_u32 s69, s69, s68")
    A(f"v_mov_b32 v{vtmp}, s69")
    for i in range(nslots):
        A(f"v_mov_b32 v{vtmp+1}, s{sreg+2*i}")
        A(f"global_store_dword v{vtmp}, v{vtmp+1}, s[{ws}:{ws+1}] offset:{4*i}")

def gen_k1(opt):
    A = Asm()
    diag = opt.get("diag", False)
    st = opt.get("k1_store", "")
    A(kernel_header("k1_kernel"))
    A("s_cmp_ge_u32 s2, 256")
    A("s_cbranch_scc1 L_k1_end")
    stamp(A, diag, 0)
    A("s_load_dwordx2 s[4:5], s[0:1], 0")
    A("s_load_dwordx2 s[6:7], s[0:1], 104")
    A("s_load_dwordx8 s[8:15], s[0:1], 8")
    A("s_load_dwordx4 s[16:19], s[0:1], 40")
    A("s_lshl_b32 s3, s2, 13")
    A("v_lshrrev_b32 v1, 6, v0")
    A("v_and_b32 v2, 63, v0")
    A("v_lshlrev_b32 v3, 11, v1")
    A("v_lshl_add_u32 v3, v2, 4, v3")
    A("v_add_u32 v3, s3, v3")
    A("v_lshl_add_u32 v4, v0, 2, s3")
    A("v_add_u32 v5, 4096, v4")
    A("s_mov_b32 s20, 0x3f803f80")
    A("s_mov_b32 s21, 0xffff0000")
    A("s_mov_b32 s22, 0x05040100")
    A("s_mov_b32 s23, 0x07060302")
    A("s_waitcnt lgkmcnt(0)")
    A("global_load_dwordx4 v[8:11], v3, s[4:5]")
    A("global_load_dwordx4 v[12:15], v3, s[4:5] offset:1024")
    for r_ in range(8):
        A(f"global_load_dword v{16+r_}, v{4 if r_ < 4 else 5}, s[4:5] offset:{(r_ % 4) * 1024}")
    nlater = 0
    if opt.get("k1_prefetch", True):
        A("s_and_b32 s24, s2, 7")
        A("s_lshl_b32 s24, s24, 5")
        A("s_lshr_b32 s25, s2, 3")
        A("s_add_u32 s24, s24, s25")
        A("s_lshl_b32 s24, s24, 9")
        A("v_lshl_add_u32 v6, v2, 3, s24")
        for k in range(4):
            A(f"global_load_dwordx2 v[{60+2*k}:{61+2*k}], v6, s[{8+2*k}:{9+2*k}]")
        A("v_lshlrev_b32 v7, 2, v0")
        A("global_load_dword v68, v7, s[16:17]")
        A("global_load_dword v69, v7, s[18:19]")
        nlater += 6
        A("s_getpc_b64 s[26:27]")
        A("L_k1_pc:")
        A("s_add_u32 s26, s26, L_code_begin-L_k1_pc")
        A("s_addc_u32 s27, s27, 0")
        A("s_lshr_b32 s28, s2, 3")
        A("s_lshl_b32 s28, s28, 12")
        A("s_min_u32 s28, s28, L_code_end-L_code_begin-4096")
        A("v_lshl_add_u32 v70, v0, 4, s28")
        A("v_mov_b32 v71, s27")
        A("v_add_co_u32 v70, vcc, s26, v70")
        A("v_addc_co_u32 v71, vcc, 0, v71, vcc")
        A("global_load_dwordx4 v[72:75], v[70:71], off")
        nlater += 1
    A("s_cmp_ge_u32 s2, 16")
    A("s_cbranch_scc1 L_k1_nz")
    A("s_lshl_b32 s24, s2, 10")
    A(f"s_add_u32 s24, s24, {FLAG_OFF}")
    A("v_lshl_add_u32 v76, v0, 2, s24")
    A("v_mov_b32 v77, 0")
    A("global_store_dword v76, v77, s[6:7]")
    A("s_waitcnt vmcnt(0)")
    A("L_k1_nz:")
    A(f"s_waitcnt vmcnt({8 + nlater})")
    A("v_dot2_f32_bf16 v24, v8, s20, 0")
    A("v_dot2_f32_bf16 v25, v12, s20, 0")
    A("v_dot2_f32_bf16 v26, v8, v8, 0")
    A("v_dot2_f32_bf16 v27, v12, v12, 0")
    for j in range(1, 4):
        A(f"v_dot2_f32_bf16 v24, v{8+j}, s20, v24")
        A(f"v_dot2_f32_bf16 v25, v{12+j}, s20, v25")
        A(f"v_dot2_f32_bf16 v26, v{8+j}, v{8+j}, v26")
        A(f"v_dot2_f32_bf16 v27, v{12+j}, v{12+j}, v27")
    for mod in ("row_shr:1 row_mask:0xf", "row_shr:2 row_mask:0xf", "row_shr:4 row_mask:0xf", "row_shr:8 row_mask:0xf",
                "row_bcast:15 row_mask:0xa", "row_bcast:31 row_mask:0xc"):
        for k in range(4):
            A(f"v_add_f32_dpp v{24+k}, v{24+k}, v{24+k} {mod} bank_mask:0xf")
    A("s_mov_b32 s24, 0x3b000000")
    A("v_mul_f32 v24, s24, v24")
    A("v_mul_f32 v25, s24, v25")
    A("v_mul_f32 v26, s24, v26")
    A("v_mul_f32 v27, s24, v27")
    A("v_fma_f32 v26, -v24, v24, v26")
    A("v_fma_f32 v27, -v25, v25, v27")
    A("v_max_f32 v26, 0, v26")
    A("v_max_f32 v27, 0, v27")
    A("v_cvt_pk_bf16_f32 v28, v24, v25")
    A("v_cvt_pk_bf16_f32 v29, v26, v27")
    A("v_lshlrev_b32 v24, 16, v28")
    A("v_and_b32 v25, s21, v28")
    A("v_lshlrev_b32 v26, 16, v29")
    A("v_and_b32 v27, s21, v29")
    A("v_add_f32 v26, 0x3727c5ac, v26")
    A("v_add_f32 v27, 0x3727c5ac, v27")
    A("v_cvt_pk_bf16_f32 v29, v26, v27")
    A("v_lshlrev_b32 v26, 16, v29")
    A("v_and_b32 v27, s21, v29")
    A("v_sqrt_f32 v26, v26")
    A("v_sqrt_f32 v27, v27")
    A("v_cvt_pk_bf16_f32 v29, v26, v27")
    A("v_lshlrev_b32 v26, 16, v29")
    A("v_and_b32 v27, s21, v29")
    A("v_rcp_f32 v26, v26")
    A("v_rcp_f32 v27, v27")
    A("v_lshlrev_b32 v30, 4, v1")
    A("s_mov_b32 exec_lo, 0")
    A("s_mov_b32 exec_hi, 0x80000000")
    A("ds_write_b128 v30, v[24:27]")
    A("s_mov_b64 exec, -1")
    A(f"s_waitcnt vmcnt({nlater})")
    for r_ in range(8):
        A(f"v_lshlrev_b32 v{32+r_}, 16, v{16+r_}")
        A(f"v_and_b32 v{40+r_}, s21, v{16+r_}")
    for j in range(4):
        A(f"v_perm_b32 v{56+j}, v{17+2*j}, v{16+2*j}, s22")
        A(f"v_perm_b32 v{8+j}, v{17+2*j}, v{16+2*j}, s23")
    A(f"s_mul_i32 s3, s2, {UX_STRIDE}")
    A("v_lshl_add_u32 v4, v0, 6, s3")
    A(f"global_store_dwordx4 v4, v[56:59], s[6:7] offset:32 {st}")
    A(f"global_store_dwordx4 v4, v[8:11], s[6:7] offset:48 {st}")
    A("v_mov_b32 v5, 0")
    A("s_waitcnt lgkmcnt(0)")
    A("s_barrier")
    for j in range(4):
        A(f"ds_read_b128 v[{16+4*j}:{19+4*j}], v5 offset:{16*j}")
    for j in range(4):
        A(f"s_waitcnt lgkmcnt({3-j})")
        for ch, base, dst in ((0, 32, 48), (1, 40, 52)):
            x = base + 2 * j
            A(f"v_pk_add_f32 v[{x}:{x+1}], v[{x}:{x+1}], v[{16+4*j}:{17+4*j}] neg_lo:[0,1] neg_hi:[0,1]")
        for ch, base, dst in ((0, 32, 48), (1, 40, 52)):
            x = base + 2 * j
            A(f"v_cvt_pk_bf16_f32 v{dst+j}, v{x}, v{x+1}")
        for ch, base, dst in ((0, 32, 48), (1, 40, 52)):
            x = base + 2 * j
            A(f"v_lshlrev_b32 v{x}, 16, v{dst+j}")
            A(f"v_and_b32 v{x+1}, s21, v{dst+j}")
        for ch, base, dst in ((0, 32, 48), (1, 40, 52)):
            x = base + 2 * j
            A(f"v_pk_mul_f32 v[{x}:{x+1}], v[{x}:{x+1}], v[{18+4*j}:{19+4*j}]")
        for ch, base, dst in ((0, 32, 48), (1, 40, 52)):
            x = base + 2 * j
            A(f"v_cvt_pk_bf16_f32 v{dst+j}, v{x}, v{x+1}")
    A(f"global_store_dwordx4 v4, v[48:51], s[6:7] {st}")
    A(f"global_store_dwordx4 v4, v[52:55], s[6:7] offset:16 {st}")
    if diag:
        stamp(A, diag, 1)
        A("s_waitcnt vmcnt(0)")
        stamp(A, diag, 2)
        stamp_flush(A, diag, 0, 3, 6, 60)
    A("L_k1_end:")
    A("s_endpgm")
    lines = A.finish()
    return lines, kernel_desc("k1_kernel", 80, 100, 80), "; @launch kernel=k1_kernel grid=(256,1,1) block=(256,1,1) lds=64"
```

```python
from asmlib import *
from layout import *
from k1 import stamp, stamp_flush

TAB   = 0
KT    = 0
KT_CH = 8 * 4160
ULDS  = 81920
UDATA = ULDS + 32 * 272
KC    = ULDS + 96 * 272
KC_CH = 1536
CSL   = KC + 2 * KC_CH
YP    = CSL + 1024
K2_LDS = YP + 4 * 9216
LOG2E = 0x3fb8aa3b
INV2PI = 0x3e22f983

def cmul(A, d, x, y, t):
    A(f"v_pk_mul_f32 v[{t}:{t+1}], v[{x}:{x+1}], v[{y}:{y+1}] op_sel:[0,0] op_sel_hi:[1,0]")
    A(f"v_pk_fma_f32 v[{d}:{d+1}], v[{x}:{x+1}], v[{y}:{y+1}], v[{t}:{t+1}] op_sel:[1,1,0] op_sel_hi:[0,1,1] neg_lo:[1,0,0]")

def gen_k2(opt):
    A = Asm()
    diag = opt.get("diag", False)
    st_h = opt.get("k2_store", "sc1")
    st_w = opt.get("k2_wstore", "sc1")
    GA = 100
    XW, SC, TA, TB, CA, CB = 115, 116, 120, 121, 122, 123
    A(kernel_header("k2_kernel"))
    A("s_cmp_ge_u32 s2, 256")
    A("s_cbranch_scc1 L_k2_end")
    stamp(A, diag, 0)
    A("s_load_dwordx2 s[4:5], s[0:1], 104")
    A("s_load_dwordx8 s[8:15], s[0:1], 8")
    A("s_load_dwordx4 s[16:19], s[0:1], 40")
    A("s_load_dwordx4 s[20:23], s[0:1], 64")
    A("s_load_dwordx2 s[24:25], s[0:1], 80")
    A("v_lshrrev_b32 v1, 6, v0")
    A("s_and_b32 s27, s2, 7")
    A("v_readfirstlane_b32 s26, v1")
    A("v_and_b32 v1, 63, v0")
    A("s_lshl_b32 s27, s27, 5")
    A("s_lshr_b32 s28, s2, 3")
    A("s_add_u32 s27, s27, s28")
    A("s_lshl_b32 s28, s27, 2")
    A("s_mov_b32 s36, 0xffff0000")
    A("s_mov_b32 s37, 0x05040100")
    A("s_mov_b32 s38, 0x07060302")
    A("s_mov_b32 s39, 0x3f803f80")
    A("s_waitcnt lgkmcnt(0)")
    A("s_load_dword s40, s[16:17], s28")
    A("s_load_dword s41, s[18:19], s28")
    A("s_mov_b32 s44, 0")
    A("s_cmp_ge_u32 s26, 4")
    A("s_cbranch_scc1 L_k2_aux0")
    A("s_lshl_b32 s29, s27, 9")
    A("v_lshl_add_u32 v6, v0, 1, s29")
    for k in range(4):
        A(f"global_load_ushort v{2+k}, v6, s[{8+2*k}:{9+2*k}]")
    A("s_branch L_k2_common")
    A("L_k2_aux0:")
    A("s_sub_u32 s45, s26, 4")
    A("s_lshl_b32 s29, s27, 6")
    A(f"s_add_u32 s29, s29, {UX_OFF}")
    A("s_lshl_b32 s30, s45, 6")
    A("v_add_u32 v2, s30, v1")
    A("s_lshl_b32 s30, s45, 10")
    A(f"s_add_u32 s30, s30, {UDATA}")
    A(f"s_mov_b32 s31, {UX_STRIDE}")
    for i in range(5):
        if i == 4:
            A("s_cmp_lg_u32 s45, 0")
            A("s_cbranch_scc1 L_k2_dma_done")
        A("v_mul_u32_u24 v3, 3856, v2")
        A("v_lshrrev_b32 v3, 16, v3")
        A("v_mul_u32_u24 v4, 17, v3")
        A("v_sub_u32 v4, v2, v4")
        A("v_min_u32 v4, 15, v4")
        A("v_lshrrev_b32 v5, 2, v4")
        A("v_lshl_add_u32 v3, v3, 2, v5")
        A("v_and_b32 v4, 3, v4")
        A("v_lshl_add_u32 v4, v4, 4, s29")
        A("v_mad_u32_u24 v3, v3, s31, v4")
        A("s_mov_b32 m0, s30")
        A("v_add_u32 v2, 256, v2")
        A("global_load_lds_dwordx4 v3, s[4:5]")
        A("s_add_u32 s30, s30, 4096")
    A("L_k2_dma_done:")
    A("v_mov_b32 v4, 0\nv_mov_b32 v5, 0\nv_mov_b32 v6, 0\nv_mov_b32 v7, 0")
    A("v_and_b32 v2, 255, v0")
    A("v_lshlrev_b32 v3, 4, v2")
    A(f"v_add_u32 v3, {ULDS}, v3")
    A("ds_write_b128 v3, v[4:7]")
    A("ds_write_b128 v3, v[4:7] offset:4096")
    A(f"ds_write_b128 v3, v[4:7] offset:{288*16}")
    A("v_and_b32 v3, 1, v0")
    A(f"v_mul_u32_u24 v3, {KC_CH}, v3")
    A(f"v_add_u32 v3, {KC}, v3")
    A("ds_write_b128 v3, v[4:7]")
    A("s_cmp_ge_u32 s2, 112")
    A("s_cbranch_scc1 L_k2_w2ld")
    A("s_mov_b32 s44, 1")
    A("s_and_b32 s46, s45, 1")
    A("s_cmp_eq_u32 s46, 0")
    A("s_cselect_b32 s32, s20, s22")
    A("s_cselect_b32 s33, s21, s23")
    A(f"s_mov_b32 s34, {512*3584}")
    A("s_mov_b32 s35, 0x20000")
    A("s_lshr_b32 s47, s2, 3")
    A("s_and_b32 s48, s2, 7")
    A("s_lshr_b32 s49, s45, 1")
    A("s_lshl_b32 s48, s48, 1")
    A("s_add_u32 s48, s48, s49")
    A(f"s_mul_i32 s49, s48, {32*3584}")
    A("s_lshl_b32 s50, s47, 8")
    A("s_add_u32 s49, s49, s50")
    A("v_lshrrev_b32 v2, 4, v1")
    A(f"v_mul_u32_u24 v2, {8*3584}, v2")
    A("v_and_b32 v3, 15, v1")
    A("v_lshl_add_u32 v2, v3, 4, v2")
    for e in range(8):
        if e and e % 2 == 0: A("s_add_u32 s49, s49, 7168")
        A(f"buffer_load_dwordx4 v[{128+4*e}:{131+4*e}], v2, s[32:35], s49 offen offset:{3584*(e%2)}")
    A("s_branch L_k2_common")
    A("L_k2_w2ld:")
    A("s_mov_b32 s44, 3")
    A("s_sub_u32 s46, s2, 112")
    A("s_cmp_ge_u32 s46, 112")
    A("s_cbranch_scc1 L_k2_common")
    A("s_mov_b32 s44, 2")
    A("s_mov_b32 s32, s24")
    A("s_mov_b32 s33, s25")
    A(f"s_mov_b32 s34, {1792*1024}")
    A("s_mov_b32 s35, 0x20000")
    A("s_and_b32 s48, s46, 1")
    A("s_lshl_b32 s48, s48, 2")
    A("s_add_u32 s48, s48, s45")
    A("s_lshr_b32 s46, s46, 1")
    A("s_lshr_b32 s47, s46, 2")
    A("s_lshl_b32 s47, s47, 7")
    A("s_and_b32 s49, s46, 3")
    A("s_lshl_b32 s49, s49, 1")
    A("s_add_u32 s47, s47, s49")
    A("s_lshl_b32 s47, s47, 10")
    A("s_lshl_b32 s49, s48, 7")
    A("s_add_u32 s47, s47, s49")
    A("v_lshrrev_b32 v2, 5, v1")
    A("v_lshlrev_b32 v2, 10, v2")
    A("v_bfe_u32 v3, v1, 4, 1")
    A("v_lshl_add_u32 v2, v3, 16, v2")
    A("v_and_b32 v3, 15, v1")
    A("v_lshl_add_u32 v2, v3, 3, v2")
    for e in range(8):
        if e: A("s_add_u32 s47, s47, 8192")
        A(f"buffer_load_dwordx2 v[{128+2*e}:{129+2*e}], v2, s[32:35], s47 offen")
    A("L_k2_common:")
    T0, T1, T2, T3 = 90, 91, 92, 93
    A(f"v_and_b32 v{T0}, 255, v0")
    A(f"v_lshrrev_b32 v{T1}, 8, v0")
    A(f"v_mul_u32_u24 v{XW}, {KT_CH}, v{T1}")
    A(f"v_lshl_add_u32 v{XW}, v{T0}, 4, v{XW}")
    A(f"v_mul_u32_u24 v{T1}, {KC_CH}, v{T1}")
    A(f"v_add_u32 v{T1}, {KC + 16}, v{T1}")
    A(f"v_lshlrev_b32 v{T0}, 3, v{T0}")
    A(f"v_sub_u32 v{T0}, 2047, v{T0}")
    A(f"v_cvt_f32_i32 v{T2}, v{T0}")
    A(f"v_lshl_add_u32 v{T0}, v{T0}, 1, v{T1}")
    A(f"v_add_u32 v{T3}, 256, v{T1}")
    A(f"v_subrev_u32 v{T1}, {2*17024}, v{T1}")
    for k in range(0, 16, 2):
        A(f"v_add_f32 v94, {float(-k)!r}, v{T2}" if -k not in (0,) else f"v_mov_b32 v94, v{T2}")
        A(f"v_add_f32 v95, {float(-k-1)!r}, v{T2}")
        A("v_cvt_pk_bf16_f32 v94, v94, v95")
        A("v_bfe_i32 v95, v94, 0, 16")
        A(f"v_lshl_add_u32 v95, v95, 1, v{T1}")
        A(f"v_add_u32 v96, {-2*k}, v{T0}")
        A(f"v_med3_i32 v{GA+k}, v95, v96, v{T3}")
        if k + 1 < 15:
            A("v_ashrrev_i32 v95, 16, v94")
            A(f"v_lshl_add_u32 v95, v95, 1, v{T1}")
            A(f"v_add_u32 v96, {-2*(k+1)}, v{T0}")
            A(f"v_med3_i32 v{GA+k+1}, v95, v96, v{T3}")
    A("s_lshr_b32 s50, s26, 2")
    A("s_bfe_u32 s51, s26, 0x10001")
    A("s_and_b32 s52, s26, 1")
    A(f"v_lshrrev_b32 v{T0}, 4, v1")
    A(f"v_bfe_u32 v{T1}, v1, 2, 2")
    A(f"v_lshl_add_u32 v{T1}, v{T0}, 3, v{T1}")
    A(f"v_mul_u32_u24 v{T1}, 80, v{T1}")
    A(f"v_and_b32 v{T2}, 3, v1")
    A(f"v_lshl_add_u32 v{T1}, v{T2}, 3, v{T1}")
    A("s_mul_i32 s53, s50, 40960")
    A("s_lshl_b32 s54, s52, 5")
    A("s_add_u32 s54, s54, s53")
    A(f"v_add_u32 v{TB}, s54, v{T1}")
    A("s_lshl_b32 s54, s51, 5")
    A("s_add_u32 s54, s54, s53")
    A("s_add_u32 s54, s54, 20480")
    A(f"v_add_u32 v{TA}, s54, v{T1}")
    A(f"v_and_b32 v{T1}, 15, v1")
    A("s_lshl_b32 s54, s52, 4")
    A(f"v_add_u32 v{T1}, s54, v{T1}")
    A("s_lshl_b32 s54, s51, 2")
    A(f"v_add_u32 v{T0}, s54, v{T0}")
    base = [0, 4, 256, 384, 512, 640, 680, 680]
    shb  = [3, 3, 2, 1, 0, 0, 0, 0]
    o1   = [1, 1, 1, 1, 32, 40, 0, 0]
    o2   = [2, 2, 2, 64, 64, 40, 0, 0]
    o3   = [3, 3, 3, 65, 96, 40, 0, 0]
    def lut8(vals, dst, scale=1):
        bs = [x // scale for x in vals]
        assert all(0 <= x < 256 and x * scale == y for x, y in zip(bs, vals))
        lo = sum(bs[i] << (8 * i) for i in range(4)); hi = sum(bs[4+i] << (8 * i) for i in range(4))
        A(f"s_mov_b32 s54, {lo:#x}")
        A(f"v_mov_b32 v{dst}, {hi:#x}")
        A(f"v_perm_b32 v{dst}, v{dst}, s54, v{T3}")
    A(f"v_or_b32 v{T3}, 0x0c0c0c00, v{T0}")
    lut8(shb, 94)
    A(f"v_lshlrev_b32 v{T1}, v94, v{T1}")
    lut8(base, 94, 4)
    A(f"v_lshl_add_u32 v{T1}, v94, 2, v{T1}")
    A(f"s_mul_i32 s53, s50, {KC_CH}")
    A(f"s_add_u32 s53, s53, {KC + 16}")
    A(f"v_lshl_add_u32 v{SC}, v{T1}, 1, s53")
    for i, o in enumerate((o1, o2, o3)):
        lut8(o, 94)
        A(f"v_lshl_add_u32 v{SC+1+i}, v94, 1, v{SC}")
    A(f"v_and_b32 v{T0}, 7, v1")
    A(f"v_mul_u32_u24 v{T0}, 4160, v{T0}")
    A(f"v_lshrrev_b32 v{T1}, 5, v1")
    A(f"v_bfe_u32 v{T2}, v1, 3, 2")
    A(f"v_sub_u32 v{T2}, v{T1}, v{T2}")
    A(f"v_lshl_add_u32 v{T0}, v{T2}, 4, v{T0}")
    A(f"s_mul_i32 s53, s51, {KT_CH}")
    A("s_lshl_b32 s54, s52, 10")
    A("s_sub_u32 s53, s53, s54")
    A(f"s_add_u32 s53, s53, {KT + 4080 - 32*94}")
    A(f"v_add_u32 v{CA}, s53, v{T0}")
    A(f"v_and_b32 v{T0}, 31, v1")
    A(f"v_mul_u32_u24 v{T0}, 272, v{T0}")
    A(f"v_lshl_add_u32 v{T0}, v{T1}, 6, v{T0}")
    A(f"s_mul_i32 s53, s52, {16*272}")
    A("s_lshl_b32 s54, s51, 4")
    A("s_sub_u32 s53, s54, s53")
    A(f"s_add_u32 s53, s53, {ULDS + 17*272}")
    A(f"v_add_u32 v{CB}, s53, v{T0}")
    A("s_waitcnt lgkmcnt(0)")
    stamp(A, diag, 1)
    A("s_cmp_lg_u32 s44, 0")
    A("s_cbranch_scc1 L_k2_join1")
    A("s_lshl_b32 s42, s40, 16")
    A("s_and_b32 s43, s40, s36")
    A("s_cmp_eq_u32 s51, 0")
    A("s_cselect_b32 s42, s42, s43")
    A(f"s_mov_b32 s43, {LOG2E:#x}")
    A("v_mov_b32 v6, s42")
    A("v_mul_f32 v6, s43, v6")
    A("v_exp_f32 v6, v6")
    A("v_and_b32 v7, 127, v0")
    A("v_mul_u32_u24 v7, 80, v7")
    A("s_mul_i32 s53, s51, 40960")
    A("v_add_u32 v7, s53, v7")
    A("s_waitcnt vmcnt(0)")
    for k in range(4): A(f"v_lshlrev_b32 v{2+k}, 16, v{2+k}")
    A("v_mul_f32 v2, s43, v2")
    A("v_exp_f32 v2, v2")
    A("v_cvt_pk_bf16_f32 v2, v2, v6")
    A("v_and_b32 v6, s36, v2")
    A("v_lshlrev_b32 v2, 16, v2")
    A("v_mul_f32 v2, v2, v6")
    A("v_mul_f32 v3, v3, v6")
    A("v_mul_f32 v2, -v2, s43")
    A(f"v_mul_f32 v3, {INV2PI:#x}, v3")
    A("v_add_f32 v6, v6, v6")
    H = 20
    A(f"v_mul_f32 v{H}, v4, v6")
    A(f"v_mul_f32 v{H+1}, v5, v6")
    E1, E8, E256, E16 = 8, 10, 12, 14
    for p, e in ((1.0, E1), (8.0, E8), (256.0, E256)):
        if p == 1.0:
            A(f"v_exp_f32 v16, v2")
            A(f"v_fract_f32 v17, v3")
        else:
            A(f"v_mul_f32 v16, {p!r}, v2")
            A(f"v_mul_f32 v17, {p!r}, v3")
            A(f"v_exp_f32 v16, v16")
            A(f"v_fract_f32 v17, v17")
        A(f"v_cos_f32 v{e}, v17")
        A(f"v_sin_f32 v{e+1}, v17")
        A(f"v_pk_mul_f32 v[{e}:{e+1}], v[{e}:{e+1}], v[16:17] op_sel:[0,0] op_sel_hi:[1,0]")
    cmul(A, E16, E8, E8, 16)
    P0, P1, TP = 62, 64, 66
    RE, IM = 72, 76
    Lops, Hops = [], []
    def rec(lst):
        B = Asm(); lst.append(B); return B
    B = rec(Lops)
    B(f"v_mov_b32 v{P0}, 1.0"); B(f"v_mov_b32 v{P0+1}, 0")
    B(f"v_mov_b32 v{P1}, v{E8}"); B(f"v_mov_b32 v{P1+1}, v{E8+1}")
    for k in range(16):
        B = rec(Lops)
        grp, j = divmod(k, 4)
        o = 8 * (grp & 1)
        B(f"v_cvt_pk_bf16_f32 v{RE+o+j}, v{P0}, v{P1}")
        B(f"v_cvt_pk_bf16_f32 v{IM+o+j}, v{P0+1}, v{P1+1}")
        if k < 15:
            B(f"v_pk_mul_f32 v[{TP}:{TP+1}], v[{P0}:{P0+1}], v[{E16}:{E16+1}] op_sel:[0,0] op_sel_hi:[1,0]")
            B(f"v_pk_mul_f32 v[{TP+2}:{TP+3}], v[{P1}:{P1+1}], v[{E16}:{E16+1}] op_sel:[0,0] op_sel_hi:[1,0]")
            B(f"v_pk_fma_f32 v[{P0}:{P0+1}], v[{P0}:{P0+1}], v[{E16}:{E16+1}], v[{TP}:{TP+1}] op_sel:[1,1,0] op_sel_hi:[0,1,1] neg_lo:[1,0,0]")
            B(f"v_pk_fma_f32 v[{P1}:{P1+1}], v[{P1}:{P1+1}], v[{E16}:{E16+1}], v[{TP+2}:{TP+3}] op_sel:[1,1,0] op_sel_hi:[0,1,1] neg_lo:[1,0,0]")
        if j == 3:
            B(f"ds_write_b128 v7, v[{RE+o}:{RE+o+3}] offset:{16*grp}")
            B(f"ds_write_b128 v7, v[{IM+o}:{IM+o+3}] offset:{10240+16*grp}")
    src = {1: (0, E1), 2: (1, E1), 3: (2, E1), 4: (3, E1), 5: (4, E1), 6: (5, E1), 7: (6, E1),
           8: (0, E256), 9: (2, E256), 10: (4, E256), 11: (6, E256), 12: (8, E256), 13: (10, E256), 14: (12, E256), 15: (13, E256),
           16: (14, E256), 17: (16, E256), 18: (17, E256), 19: (18, E256), 20: (19, E256)}
    HR, HI = 124, 128
    for i in range(1, 21):
        B = rec(Hops)
        cmul(B, H + 2 * i, H + 2 * src[i][0], src[i][1], TP + 4)
        if i % 2 == 1 or i == 20:
            lo = i - 1 if i % 2 == 1 else i
            hi = i if i % 2 == 1 else i
            j = (lo // 2) % 4; grp = lo // 8
            o = 8 * (grp & 1)
            B(f"v_cvt_pk_bf16_f32 v{HR+o+j}, v{H+2*lo}, v{H+2*hi}")
            B(f"v_cvt_pk_bf16_f32 v{HI+o+j}, -v{H+2*lo+1}, -v{H+2*hi+1}")
            if j == 3 or i == 20:
                B(f"ds_write_b128 v7, v[{HR+o}:{HR+o+3}] offset:{20480+16*grp}")
                B(f"ds_write_b128 v7, v[{HI+o}:{HI+o+3}] offset:{30720+16*grp}")
    li = hi_ = 0
    while li < len(Lops) or hi_ < len(Hops):
        if li < len(Lops): A.lines += Lops[li].lines; li += 1
        if hi_ < len(Hops): A.lines += Hops[hi_].lines; hi_ += 1
        if hi_ < len(Hops) and li % 4 == 0: A.lines += Hops[hi_].lines; hi_ += 1
    A("s_waitcnt lgkmcnt(0)")
    A("L_k2_join1:")
    stamp(A, diag, 2)
    A("s_barrier")
    for kk in range(8):
        for rho in range(2):
            A(f"ds_read_b64_tr_b16 v[{2+8*kk+2*rho}:{3+8*kk+2*rho}], v{TA} offset:{2560*kk+320*rho}")
        for rho in range(2):
            A(f"ds_read_b64_tr_b16 v[{6+8*kk+2*rho}:{7+8*kk+2*rho}], v{TB} offset:{2560*kk+320*rho}")
        if kk >= 2:
            q = kk - 2
            A("s_waitcnt lgkmcnt(8)")
            A(f"v_mfma_f32_16x16x32_bf16 v[68:71], v[{2+8*q}:{5+8*q}], v[{6+8*q}:{9+8*q}], {'0' if q == 0 else 'v[68:71]'}")
    for q in (6, 7):
        A(f"s_waitcnt lgkmcnt({4 if q == 6 else 0})")
        A(f"v_mfma_f32_16x16x32_bf16 v[68:71], v[{2+8*q}:{5+8*q}], v[{6+8*q}:{9+8*q}], v[68:71]")
    A("v_cvt_pk_bf16_f32 v72, v68, v69")
    A("v_cvt_pk_bf16_f32 v73, v70, v71")
    A(f"ds_write_b16 v{SC}, v72")
    A(f"ds_write_b16_d16_hi v{SC+1}, v72")
    A(f"ds_write_b16 v{SC+2}, v73")
    A(f"ds_write_b16_d16_hi v{SC+3}, v73")
    A("s_waitcnt lgkmcnt(0)")
    A("s_barrier")
    stamp(A, diag, 3)
    E = 2
    for k in range(15):
        A(f"ds_read_u16 v{E+k}, v{GA+k}")
    A("v_mov_b32 v60, 0\nv_mov_b32 v61, 0\nv_mov_b32 v62, 0\nv_mov_b32 v63, 0")
    A("v_and_b32 v64, 15, v1")
    A("v_mul_u32_u24 v64, 4160, v64")
    A("v_lshrrev_b32 v65, 4, v1")
    A("v_lshl_add_u32 v64, v65, 4, v64")
    A(f"ds_write_b128 v64, v[60:63] offset:{KT + 4096}")
    D, D2, O, O2 = 20, 29, 38, 47
    def pk(dst, k): A(f"v_lshl_or_b32 v{dst}, v{E+k+1}, 16, v{E+k}")
    A("s_waitcnt lgkmcnt(7)")
    for k in range(4): pk(D + k, 2 * k)
    A(f"ds_write_b128 v{XW}, v[{D}:{D+3}] offset:{7*4160}")
    for k in range(4): pk(O + k, 2 * k + 1)
    A(f"ds_write_b128 v{XW}, v[{O}:{O+3}] offset:{6*4160}")
    A("s_waitcnt lgkmcnt(3)")
    for k in range(1, 5): pk(D2 + k, 2 * k)
    A(f"ds_write_b128 v{XW}, v[{D2+1}:{D2+4}] offset:{5*4160}")
    for k in range(1, 5): pk(O2 + k, 2 * k + 1)
    A(f"ds_write_b128 v{XW}, v[{O2+1}:{O2+4}] offset:{4*4160}")
    for k in range(4, 6): pk(D + k, 2 * k)
    A(f"ds_write_b128 v{XW}, v[{D+2}:{D+5}] offset:{3*4160}")
    for k in range(4, 6): pk(O + k, 2 * k + 1)
    A(f"ds_write_b128 v{XW}, v[{O+2}:{O+5}] offset:{2*4160}")
    for k in range(5, 7): pk(D2 + k, 2 * k)
    A(f"ds_write_b128 v{XW}, v[{D2+3}:{D2+6}] offset:{1*4160}")
    for k in range(5, 7): pk(O2 + k, 2 * k + 1)
    A(f"ds_write_b128 v{XW}, v[{O2+3}:{O2+6}]")
    if diag:
        A("s_waitcnt lgkmcnt(0)")
        stamp(A, diag, 4)
    A("s_cmp_lg_u32 s44, 3")
    A("s_cbranch_scc1 L_k2_w8")
    A("s_waitcnt vmcnt(0)")
    A("L_k2_w8:")
    A("s_waitcnt vmcnt(8) lgkmcnt(0)")
    A("s_barrier")
    stamp(A, diag, 5)
    if diag: A("s_memtime s[90:91]")
    A("s_cmp_lg_u32 s44, 0")
    A("s_cbranch_scc1 L_k2_aux1")
    ACC0, ACC1, FR = 64, 80, 2
    steps = [(jj, s_) for jj in range(16) for s_ in range(2)]
    def reads(i):
        jj, s_ = steps[i]; f = FR + 16 * (i % 3)
        m = 2 * jj - s_
        return [f"ds_read_b128 v[{f}:{f+3}], v{CA} offset:{32*(94-m)}",
                f"ds_read_b128 v[{f+4}:{f+7}], v{CB} offset:{(15-jj)*272+128*s_}",
                f"ds_read_b128 v[{f+8}:{f+11}], v{CB} offset:{(15-jj+32)*272+128*s_}",
                f"ds_read_b128 v[{f+12}:{f+15}], v{CA} offset:{32*(94-m-64)}"]
    for i in (0, 1):
        for x in reads(i): A(x)
    n = len(steps)
    for i in range(n):
        f = FR + 16 * (i % 3)
        nx = reads(i + 2) if i + 2 < n else []
        rem = 4 if i + 1 < n else 0
        c0 = "0" if i == 0 else f"v[{ACC0}:{ACC0+15}]"
        c1 = "0" if i == 0 else f"v[{ACC1}:{ACC1+15}]"
        A(f"s_waitcnt lgkmcnt({rem+2})")
        A(f"v_mfma_f32_32x32x16_bf16 v[{ACC0}:{ACC0+15}], v[{f}:{f+3}], v[{f+4}:{f+7}], {c0}")
        k = 0
        if nx: A(nx[0]); k += 1
        A(f"s_waitcnt lgkmcnt({rem+1+k})")
        A(f"v_mfma_f32_32x32x16_bf16 v[{ACC1}:{ACC1+15}], v[{f}:{f+3}], v[{f+8}:{f+11}], {c1}")
        if nx: A(nx[1]); A(nx[2]); k += 2
        A(f"s_waitcnt lgkmcnt({rem+k})")
        A(f"v_mfma_f32_32x32x16_bf16 v[{ACC1}:{ACC1+15}], v[{f+12}:{f+15}], v[{f+4}:{f+7}], v[{ACC1}:{ACC1+15}]")
        if nx: A(nx[3])
    A("v_and_b32 v2, 31, v1")
    A("v_mul_u32_u24 v2, 144, v2")
    A("v_lshrrev_b32 v3, 5, v1")
    A("v_lshl_add_u32 v2, v3, 4, v2")
    A("s_mul_i32 s53, s26, 9216")
    A(f"s_add_u32 s53, s53, {YP}")
    A("v_add_u32 v2, s53, v2")
    for T, acc in ((0, ACC0), (1, ACC1)):
        for g in range(4):
            A(f"ds_write_b128 v2, v[{acc+4*g}:{acc+4*g+3}] offset:{T*32*144+32*g}")
    A("s_branch L_k2_join2")
    A("L_k2_aux1:")
    A("s_cmp_eq_u32 s44, 2")
    A("s_cbranch_scc1 L_k2_w2work")
    A("s_cmp_eq_u32 s44, 3")
    A("s_cbranch_scc1 L_k2_join2")
    A("s_lshr_b32 s49, s48, 1")
    A("s_mul_i32 s49, s49, 28672")
    A("s_and_b32 s50, s48, 1")
    A("s_lshl_b32 s50, s50, 11")
    A("s_add_u32 s49, s49, s50")
    A("s_lshl_b32 s50, s46, 10")
    A("s_add_u32 s49, s49, s50")
    A(f"s_add_u32 s49, s49, {W13_OFF}")
    A("v_lshl_add_u32 v2, v1, 4, s49")
    for j in range(4): A(f"v_mov_b32 v{4+j}, s39")
    A("s_lshl_b32 s51, s47, 3")
    A("s_waitcnt vmcnt(0)")
    for c in range(8):
        o = 8 + 4 * c
        A("s_mul_i32 s52, s51, 9363")
        A("s_lshr_b32 s52, s52, 16")
        A(f"s_mul_i32 s53, s52, {229376 - 7*4096}")
        A("s_lshl_b32 s54, s51, 12")
        A("s_add_u32 s53, s53, s54")
        A("v_add_u32 v3, s53, v2")
        for j in range(4):
            A(f"v_perm_b32 v{o+j}, v{128+4*(2*j+1)+(c>>1)}, v{128+4*(2*j)+(c>>1)}, s{38 if c & 1 else 37}")
        A(f"global_store_dwordx4 v3, v[{o}:{o+3}], s[4:5] {st_w}")
        A(f"v_mfma_f32_16x16x32_bf16 v[{64+4*c}:{67+4*c}], v[4:7], v[{o}:{o+3}], 0")
        A("s_add_u32 s51, s51, 1")
    A("s_lshl_b32 s49, s47, 14")
    A("s_lshl_b32 s50, s46, 10")
    A("s_add_u32 s49, s49, s50")
    A("s_lshr_b32 s50, s48, 2")
    A("s_lshl_b32 s50, s50, 8")
    A("s_add_u32 s49, s49, s50")
    A("s_and_b32 s50, s48, 3")
    A("s_lshl_b32 s50, s50, 2")
    A("s_add_u32 s49, s49, s50")
    A(f"s_add_u32 s49, s49, {CS_OFF}")
    A("v_lshrrev_b32 v2, 4, v1")
    A("v_and_b32 v3, 15, v1")
    A("v_lshlrev_b32 v3, 4, v3")
    A("v_lshl_add_u32 v3, v2, 12, v3")
    A("v_add_u32 v3, s49, v3")
    for q in range(1, 4):
        A(f"v_cmp_eq_u32 vcc, {q}, v2")
        A(f"v_cndmask_b32 v64, v64, v{64+8*q}, vcc")
        A(f"v_cndmask_b32 v68, v68, v{68+8*q}, vcc")
    for k_, rg in enumerate((64, 68)):
        A(f"v_cvt_pk_bf16_f32 v8, v{rg}, v{rg}")
        A("v_lshlrev_b32 v8, 16, v8")
        A(f"v_sub_f32 v8, v{rg}, v8")
        A(f"v_cvt_pk_bf16_f32 v{9+k_}, v{rg}, v8")
        A(f"global_store_dword v3, v{9+k_}, s[4:5] offset:{2048*k_} {st_w}")
    A("s_branch L_k2_join2")
    A("L_k2_w2work:")
    A(f"s_mul_i32 s49, s48, {56*4096}")
    A("s_lshl_b32 s50, s46, 12")
    A("s_add_u32 s49, s49, s50")
    A(f"s_add_u32 s49, s49, {W2_OFF}")
    A("v_lshl_add_u32 v2, v1, 4, s49")
    A("s_waitcnt vmcnt(0)")
    for dt in range(4):
        o = 8 + 4 * dt
        for j in range(4):
            A(f"v_perm_b32 v{o+j}, v{128+2*(2*j+1)+(dt>>1)}, v{128+2*(2*j)+(dt>>1)}, s{38 if dt & 1 else 37}")
        A(f"global_store_dwordx4 v2, v[{o}:{o+3}], s[4:5] offset:{1024*dt} {st_w}")
    A("L_k2_join2:")
    stamp(A, diag, 6)
    if diag: A("s_memtime s[92:93]")
    A("v_lshrrev_b32 v50, 3, v0")
    A("v_bfe_u32 v51, v0, 2, 1")
    A("v_and_b32 v52, 3, v0")
    A("v_mul_u32_u24 v53, 272, v50")
    A("v_lshl_add_u32 v53, v52, 6, v53")
    A("v_lshl_add_u32 v53, v51, 4, v53")
    A(f"v_add_u32 v53, {UDATA}, v53")
    A("ds_read_b128 v[56:59], v53")
    A("ds_read_b128 v[60:63], v53 offset:32")
    A("v_mul_u32_u24 v54, 144, v50")
    A("v_lshl_add_u32 v54, v52, 5, v54")
    A(f"v_mul_u32_u24 v55, {2*9216}, v51")
    A(f"v_add3_u32 v54, v54, v55, 0")
    A(f"v_add_u32 v54, {YP}, v54")
    A("s_lshl_b32 s42, s41, 16")
    A("s_and_b32 s43, s41, s36")
    A("v_mov_b32 v4, s42")
    A("v_mov_b32 v5, s43")
    A("v_cmp_eq_u32 vcc, 1, v51")
    A("v_cndmask_b32 v4, v4, v5, vcc")
    A(f"s_mov_b32 s53, {HT_STRIDE}")
    A("s_lshl_b32 s54, s27, 7")
    A(f"s_add_u32 s54, s54, {HT_OFF}")
    A("s_lshr_b32 s55, s27, 1")
    A("s_and_b32 s55, s55, 2")
    A("v_and_b32 v6, 7, v0")
    A("v_xor_b32 v6, s55, v6")
    A("v_lshl_add_u32 v6, v6, 4, s54")
    A("v_mad_u32_u24 v6, v50, s53, v6")
    A("s_waitcnt lgkmcnt(0)")
    for j in range(4):
        A(f"v_lshlrev_b32 v{8+2*j}, 16, v{56+j}")
        A(f"v_and_b32 v{9+2*j}, s36, v{56+j}")
        A(f"v_pk_mul_f32 v[{8+2*j}:{9+2*j}], v[{8+2*j}:{9+2*j}], v[4:5] op_sel:[0,0] op_sel_hi:[1,0]")
        A(f"v_cvt_pk_bf16_f32 v{56+j}, v{8+2*j}, v{9+2*j}")
        A(f"v_lshlrev_b32 v{8+2*j}, 16, v{56+j}")
        A(f"v_and_b32 v{9+2*j}, s36, v{56+j}")
        A(f"v_lshlrev_b32 v{16+2*j}, 16, v{60+j}")
        A(f"v_and_b32 v{17+2*j}, s36, v{60+j}")
    A("s_barrier")
    stamp(A, diag, 7)
    A("ds_read_b128 v[24:27], v54")
    A("ds_read_b128 v[32:35], v54 offset:9216")
    A("ds_read_b128 v[28:31], v54 offset:16")
    A(f"ds_read_b128 v[36:39], v54 offset:{9216+16}")
    for j in range(4):
        if j == 0: A("s_waitcnt lgkmcnt(2)")
        if j == 2: A("s_waitcnt lgkmcnt(0)")
        y = 24 + 2 * j
        A(f"v_pk_add_f32 v[{y}:{y+1}], v[{y}:{y+1}], v[{y+8}:{y+9}]")
        A(f"v_cvt_pk_bf16_f32 v40, v{y}, v{y+1}")
        A(f"v_lshlrev_b32 v{y}, 16, v40")
        A(f"v_and_b32 v{y+1}, s36, v40")
        A(f"v_pk_add_f32 v[{y}:{y+1}], v[{y}:{y+1}], v[{8+2*j}:{9+2*j}]")
        A(f"v_cvt_pk_bf16_f32 v40, v{y}, v{y+1}")
        A(f"v_lshlrev_b32 v{y}, 16, v40")
        A(f"v_and_b32 v{y+1}, s36, v40")
        A(f"v_pk_add_f32 v[{y}:{y+1}], v[{y}:{y+1}], v[{16+2*j}:{17+2*j}]")
        A(f"v_cvt_pk_bf16_f32 v{44+j}, v{y}, v{y+1}")
    A(f"global_store_dwordx4 v6, v[44:47], s[4:5] {st_h}")
    A("L_k2_fin:")
    if diag:
        A("s_and_b32 s68, s26, 3")
        A("s_cmp_lg_u32 s68, 0")
        A("s_cbranch_scc1 L_k2_end")
        stamp(A, diag, 8)
        A("s_waitcnt vmcnt(0)")
        stamp(A, diag, 9)
        stamp_flush(A, diag, 1, 12, 4, 60, wave_sreg=26)
    A("L_k2_end:")
    A("s_endpgm")
    lines = A.finish()
    return lines, kernel_desc("k2_kernel", 168, 102, 168), f"; @launch kernel=k2_kernel grid=(256,1,1) block=(512,1,1) lds={K2_LDS}"
```

```python
from asmlib import *
from layout import *
from k1 import stamp, stamp_flush

SLOT = 45056
CSL3 = 3 * SLOT
HTL  = CSL3 + 14336
K3_LDS = HTL + 8192
LOG2E = 0x3fb8aa3b

class Q:
    def __init__(self, A, name, mx):
        self.A, self.name, self.mx = A, name, mx
        self.n = 0; self.done = 0; self.tag = {}
    def issue(self, tag=None):
        self.n += 1
        if tag is not None: self.tag[tag] = self.n
    def wait(self, tag):
        k = self.tag[tag]
        if k <= self.done: return
        c = min(self.n - k, self.mx)
        self.A(f"s_waitcnt {self.name}({c})")
        self.done = self.n - c
    def wait_all(self):
        if self.done < self.n: self.A(f"s_waitcnt {self.name}(0)")
        self.done = self.n

def gen_k3(opt):
    A = Asm()
    diag = opt.get("diag", False)
    X, G = opt.get("k3_X", 6), opt.get("k3_G", 4)
    RA = 14
    ACC = 0 + 16
    AR  = 128
    BR  = 184
    GS  = 200
    ONES = 216
    VA  = 220
    VB  = 223
    VL  = 229
    TMP = 230
    def acc(T, mat, n): return ACC + 16 * T + 8 * mat + 4 * n
    vm = Q(A, "vmcnt", 63); lg = Q(A, "lgkmcnt", 15)
    A(kernel_header("k3_kernel"))
    A("s_cmp_ge_u32 s2, 256")
    A("s_cbranch_scc1 L_k3_end")
    stamp(A, diag, 0)
    A("s_load_dwordx2 s[4:5], s[0:1], 104")
    A("s_load_dwordx2 s[6:7], s[0:1], 88")
    A("v_lshrrev_b32 v1, 6, v0")
    A("s_and_b32 s20, s2, 7")
    A("v_readfirstlane_b32 s12, v1")
    A("v_and_b32 v1, 63, v0")
    A("s_lshr_b32 s21, s2, 3")
    A("s_lshr_b32 s13, s20, 2")
    A("s_lshl_b32 s13, s13, 3")
    A("s_and_b32 s22, s21, 7")
    A("s_add_u32 s13, s13, s22")
    A("s_and_b32 s14, s20, 3")
    A("s_lshl_b32 s14, s14, 2")
    A("s_lshr_b32 s22, s21, 3")
    A("s_add_u32 s14, s14, s22")
    A("s_lshl_b32 s15, s20, 2")
    A("s_and_b32 s22, s21, 3")
    A("s_add_u32 s15, s15, s22")
    A("s_lshr_b32 s16, s21, 2")
    A(f"v_lshlrev_b32 v{VL}, 4, v1")
    A("s_mul_i32 s17, s14, 229376")
    A("s_mul_i32 s19, s12, 7168")
    A("s_add_u32 s17, s17, s19")
    A(f"s_add_u32 s17, s17, {W13_OFF}")
    A("s_lshl_b32 s18, s13, 2")
    A("s_add_u32 s18, s18, s12")
    A(f"s_mul_i32 s18, s18, {HT_STRIDE}")
    A(f"s_add_u32 s18, s18, {HT_OFF}")
    A("s_lshl_b32 s23, s12, 12")
    A("s_add_u32 s23, s23, 28672")
    A(f"s_mov_b32 s10, {WS_USED}")
    A("s_mov_b32 s11, 0x20000")
    A("s_waitcnt lgkmcnt(0)")
    A("s_mov_b32 s8, s4")
    A("s_mov_b32 s9, s5")
    def dma_ops(st):
        sl = (st % 3) * SLOT
        o = []
        o.append((f"s_add_u32 m0, s23, {sl}", False))
        for k in range(4): o.append((f"buffer_load_dwordx4 v{VL}, s[8:11], s18 offen offset:{1024*k} lds", True))
        o.append((f"s_add_u32 m0, s19, {sl}", False))
        o.append(("s_add_u32 s18, s18, 4096", False))
        for k in range(4): o.append((f"buffer_load_dwordx4 v{VL}, s[8:11], s17 offen offset:{1024*k} lds", True))
        o.append((f"s_add_u32 m0, s19, {sl + 4096}", False))
        o.append(("s_add_u32 s24, s17, 4096", False))
        for k in range(3): o.append((f"buffer_load_dwordx4 v{VL}, s[8:11], s24 offen offset:{1024*k} lds", True))
        o.append(("s_add_u32 s17, s17, 28672", False))
        return o
    def emit(op, tag=None):
        A(op[0])
        if op[1]: vm.issue(tag)
    for st in range(3):
        for op in dma_ops(st): emit(op, ("st", st))
    A("s_min_u32 s24, s12, 2")
    A("s_lshl_b32 s24, s24, 12")
    A("s_cmp_eq_u32 s12, 3")
    A("s_cselect_b32 s24, 10240, s24")
    A(f"s_add_u32 m0, s24, {CSL3}")
    A("s_mul_i32 s25, s14, 14336")
    A("s_add_u32 s25, s25, s24")
    A(f"s_add_u32 s25, s25, {CS_OFF}")
    for k in range(4):
        A(f"buffer_load_dwordx4 v{VL}, s[8:11], s25 offen offset:{1024*k} lds"); vm.issue("aux")
    A("s_lshl_b32 s24, s12, 11")
    A(f"s_add_u32 m0, s24, {HTL}")
    A("s_lshl_b32 s25, s15, 1")
    A("s_lshr_b32 s26, s12, 1")
    A("s_add_u32 s25, s25, s26")
    A(f"s_mul_i32 s25, s25, {HT_STRIDE}")
    A("s_lshl_b32 s26, s16, 12")
    A("s_add_u32 s25, s25, s26")
    A("s_and_b32 s26, s12, 1")
    A("s_lshl_b32 s26, s26, 11")
    A("s_add_u32 s25, s25, s26")
    A(f"s_add_u32 s25, s25, {HT_OFF}")
    for k in range(2):
        A(f"buffer_load_dwordx4 v{VL}, s[8:11], s25 offen offset:{1024*k} lds"); vm.issue("aux")
    for sl in range(3): A(f"v_add_u32 v{VA+sl}, {sl*SLOT}, v{VL}")
    A("v_lshrrev_b32 v2, 4, v1")
    A("v_bfe_u32 v3, v1, 2, 2")
    A("v_lshl_add_u32 v3, v2, 3, v3")
    A("v_lshlrev_b32 v3, 6, v3")
    A("v_and_b32 v4, 3, v1")
    A("v_lshl_add_u32 v3, v4, 3, v3")
    A("v_and_b32 v4, 1, v2")
    A("v_lshl_add_u32 v3, v4, 5, v3")
    A("v_add_u32 v3, s23, v3")
    A("v_xor_b32 v4, 32, v3")
    for sl in range(3):
        A(f"v_add_u32 v{VB+2*sl}, {sl*SLOT}, v3")
        A(f"v_add_u32 v{VB+2*sl+1}, {sl*SLOT}, v4")
    for j in range(4): A(f"v_mov_b32 v{ONES+j}, 0x3f803f80")
    A("v_and_b32 v4, 3, v1")
    A("v_cmp_eq_u32 s[30:31], 1, v4")
    A("v_cmp_eq_u32 s[32:33], 2, v4")
    A("v_cmp_eq_u32 s[34:35], 3, v4")
    A("v_bfe_u32 v4, v1, 2, 2")
    A("v_cmp_eq_u32 s[36:37], v2, v4")
    A("s_mov_b32 s38, 0xffff0000")
    A(f"s_mul_i32 s27, s16, {56*4096}")
    A(f"s_mul_i32 s28, s12, {14*4096}")
    A("s_add_u32 s27, s27, s28")
    A(f"s_add_u32 s27, s27, {W2_OFF}")
    w2ops = []
    for f in range(56):
        w2ops.append((f"buffer_load_dwordx4 a[{4*f}:{4*f+3}], v{VL}, s[8:11], s27 offen offset:{1024*(f%4)}", True))
        if f % 4 == 3: w2ops.append(("s_add_u32 s27, s27, 4096", False))
    NF = 16 * 14
    def rdA(f):
        sg, r_ = divmod(f, 14); st = sg >> 1
        reg = AR + 4 * (f % RA)
        A(f"ds_read_b128 v[{reg}:{reg+3}], v{VA + st % 3} offset:{(r_>>1)*4096 + (sg&1)*2048 + (r_&1)*1024}")
        lg.issue(("A", f))
    def rdB(sg, n, rho):
        st = sg >> 1
        reg = BR + 8 * (sg & 1) + 4 * n + 2 * rho
        A(f"ds_read_b64_tr_b16 v[{reg}:{reg+1}], v{VB + 2*(st % 3) + n} offset:{(sg&1)*2048 + rho*256}")
        lg.issue(("B", sg, n))
    def rdC(f):
        reg = AR + 4 * ((NF + f) % RA)
        A(f"ds_read_b128 v[{reg}:{reg+3}], v{TMP} offset:{1024*f}")
        lg.issue(("A", NF + f))
    A(f"v_add_u32 v{TMP}, {CSL3}, v{VL}")
    side = []
    pend = []
    def stage_open(st):
        lg.wait_all()
        vm.wait(("st", st))
        if st == 3: vm.wait("aux")
        A("s_barrier")
        if st >= 1 and st + 2 < 8:
            side.extend((op, ("st", st + 2)) for op in dma_ops(st + 2))
        if st == 6: side.extend((op, "w2") for op in w2ops)
        for n in range(2):
            for rho in range(2): pend.append((14 * (2 * st - 1), lambda n=n, rho=rho: rdB(2 * st, n, rho)))
        for k in range(28):
            pend.append((0, lambda k=k: rdA(28 * st + k)))
            if k == 8:
                for n in range(2):
                    for rho in range(2): pend.append((14 * (2 * st), lambda n=n, rho=rho: rdB(2 * st + 1, n, rho)))
        if st == 7:
            for k in range(14): pend.append((0, lambda k=k: rdC(k)))
    issuedA = [0]
    def pump(f_cur, maxn):
        k = 0
        while pend and k < maxn:
            nA = sum(1 for t in lg.tag if t[0] == "A")
            if nA - f_cur >= X + G + 1: break
            if pend[0][0] > f_cur: break
            pend.pop(0)[1](); k += 1
    stage_open(0)
    if diag: stamp(A, diag, 1)
    pump(0, 4 + X)
    fin = []
    for f in range(NF):
        sg, r_ = divmod(f, 14); T, mat = divmod(r_, 2)
        if (f + X) % 28 == 0 and f + X < NF:
            assert not pend, (f, len(pend))
            stage_open((f + X) // 28)
        b0 = BR + 8 * (sg & 1)
        if r_ == 0:
            lg.wait(("B", sg, 1))
            for n in range(2):
                c = "0" if sg == 0 else f"v[{GS+4*n}:{GS+4*n+3}]"
                A(f"v_mfma_f32_16x16x32_bf16 v[{GS+4*n}:{GS+4*n+3}], v[{b0+4*n}:{b0+4*n+3}], v[{b0+4*n}:{b0+4*n+3}], {c}")
                c = "0" if sg == 0 else f"v[{GS+8+4*n}:{GS+8+4*n+3}]"
                A(f"v_mfma_f32_16x16x32_bf16 v[{GS+8+4*n}:{GS+8+4*n+3}], v[{ONES}:{ONES+3}], v[{b0+4*n}:{b0+4*n+3}], {c}")
            if sg == 15:
                t = TMP + 2
                for n in range(2):
                    g_ = GS + 4 * n
                    fin += [f"v_cndmask_b32 v{g_}, v{g_}, v{g_+1}, s[30:31]", f"v_cndmask_b32 v{g_}, v{g_}, v{g_+2}, s[32:33]",
                            f"v_cndmask_b32 v{g_}, v{g_}, v{g_+3}, s[34:35]", f"v_cndmask_b32 v{g_}, 0, v{g_}, s[36:37]",
                            f"v_mov_b32 v{g_+1}, v{g_}"]
                fin += [f"v_permlane16_swap_b32 v{GS}, v{GS+1}", f"v_permlane16_swap_b32 v{GS+4}, v{GS+5}",
                        f"v_add_f32 v{GS}, v{GS}, v{GS+1}", f"v_add_f32 v{GS+4}, v{GS+4}, v{GS+5}",
                        f"v_mov_b32 v{GS+1}, v{GS}", f"v_mov_b32 v{GS+5}, v{GS+4}",
                        f"v_mul_f32 v{GS+8}, 0x3b000000, v{GS+8}", f"v_mul_f32 v{GS+12}, 0x3b000000, v{GS+12}",
                        f"v_permlane32_swap_b32 v{GS}, v{GS+1}", f"v_permlane32_swap_b32 v{GS+4}, v{GS+5}",
                        f"v_add_f32 v{GS}, v{GS}, v{GS+1}", f"v_add_f32 v{GS+4}, v{GS+4}, v{GS+5}",
                        f"v_cvt_pk_bf16_f32 v{t}, -v{GS+8}, -v{GS+8}", f"v_cvt_pk_bf16_f32 v{t+4}, -v{GS+12}, -v{GS+12}",
                        f"v_mul_f32 v{GS}, 0x3b000000, v{GS}", f"v_mul_f32 v{GS+4}, 0x3b000000, v{GS+4}"]
                fin += [f"v_mov_b32 v{t+j}, v{t}" for j in (1, 2, 3)] + [f"v_mov_b32 v{t+4+j}, v{t+4}" for j in (1, 2, 3)]
                fin += [f"v_fma_f32 v{GS}, -v{GS+8}, v{GS+8}, v{GS}", f"v_fma_f32 v{GS+4}, -v{GS+12}, v{GS+12}, v{GS+4}",
                        f"v_max_f32 v{GS}, 0, v{GS}", f"v_max_f32 v{GS+4}, 0, v{GS+4}",
                        f"v_cvt_pk_bf16_f32 v{GS+1}, v{GS}, v{GS+4}",
                        f"v_lshlrev_b32 v{GS}, 16, v{GS+1}", f"v_and_b32 v{GS+4}, s38, v{GS+1}",
                        f"v_add_f32 v{GS}, 0x3727c5ac, v{GS}", f"v_add_f32 v{GS+4}, 0x3727c5ac, v{GS+4}",
                        f"v_cvt_pk_bf16_f32 v{GS+1}, v{GS}, v{GS+4}",
                        f"v_lshlrev_b32 v{GS}, 16, v{GS+1}", f"v_and_b32 v{GS+4}, s38, v{GS+1}",
                        f"v_sqrt_f32 v{GS}, v{GS}", f"v_sqrt_f32 v{GS+4}, v{GS+4}",
                        f"v_cvt_pk_bf16_f32 v{GS+1}, v{GS}, v{GS+4}",
                        f"v_lshlrev_b32 v{GS}, 16, v{GS+1}", f"v_and_b32 v{GS+4}, s38, v{GS+1}",
                        f"v_rcp_f32 v{GS+2}, v{GS}", f"v_rcp_f32 v{GS+6}, v{GS+4}",
                        f"v_mul_f32 v{GS}, v{GS}, v{GS}", f"v_mul_f32 v{GS+4}, v{GS+4}, v{GS+4}",
                        f"v_mul_f32 v{GS+2}, {0x80000000 | LOG2E:#x}, v{GS+2}", f"v_mul_f32 v{GS+6}, {0x80000000 | LOG2E:#x}, v{GS+6}"]
        lg.wait(("A", f))
        ar = AR + 4 * (f % RA)
        for n in range(2):
            d = acc(T, mat, n)
            c = "0" if sg == 0 else f"v[{d}:{d+3}]"
            A(f"v_mfma_f32_16x16x32_bf16 v[{d}:{d+3}], v[{ar}:{ar+3}], v[{b0+4*n}:{b0+4*n+3}], {c}")
            pump(f, 1)
            if n == 1:
                k = 0
                while side and k < (2 if sg >= 11 else 1):
                    op, tag = side.pop(0); emit(op, tag)
                    if op[1]: k += 1
            if fin and r_ >= 2:
                for _ in range(2):
                    if fin: A(fin.pop(0))
    assert not side, len(side)
    BX = TMP + 2
    nb = sum(1 for x in fin if f"v{BX}" in x or f"v{BX+4}" in x)
    while any((f"v_mov_b32 v{BX+j}," in x) for x in fin for j in range(8)): A(fin.pop(0))
    for f in range(14):
        T, mat = divmod(f, 2)
        pump(NF + f, 2)
        lg.wait(("A", NF + f))
        ar = AR + 4 * ((NF + f) % RA)
        for n in range(2):
            d = acc(T, mat, n)
            A(f"v_mfma_f32_16x16x32_bf16 v[{d}:{d+3}], v[{ar}:{ar+3}], v[{BX+4*n}:{BX+4*n+3}], v[{d}:{d+3}]")
            if fin: A(fin.pop(0))
    while fin: A(fin.pop(0))
    if diag: stamp(A, diag, 2)
    A("s_lshl_b32 s24, s13, 3")
    A("s_lshl_b32 s25, s12, 1")
    A("s_add_u32 s24, s24, s25")
    A(f"s_mul_i32 s24, s24, {HID_STRIDE}")
    A(f"s_mul_i32 s25, s14, {7*512}")
    A("s_add_u32 s24, s24, s25")
    A(f"s_add_u32 s24, s24, {HID_OFF}")
    A("v_bfe_u32 v2, v1, 4, 1")
    A(f"v_mul_u32_u24 v2, {HID_STRIDE}, v2")
    A("v_lshrrev_b32 v3, 5, v1")
    A("v_lshl_add_u32 v2, v3, 8, v2")
    A("v_and_b32 v3, 15, v1")
    A("v_lshl_add_u32 v2, v3, 4, v2")
    E = AR
    for T in range(7):
        o = E + 32 + 4 * (T & 1)
        for n in range(2):
            g_, u_ = acc(T, 0, n), acc(T, 1, n); e = E + 4 * n
            for h_ in range(2):
                A(f"v_pk_mul_f32 v[{e+2*h_}:{e+2*h_+1}], v[{g_+2*h_}:{g_+2*h_+1}], v[{GS+4*n+2}:{GS+4*n+3}] op_sel:[0,0] op_sel_hi:[1,0]")
        for n in range(2):
            g_, u_ = acc(T, 0, n), acc(T, 1, n); e = E + 4 * n
            for j in range(4): A(f"v_exp_f32 v{e+j}, v{e+j}")
            for h_ in range(2):
                A(f"v_pk_mul_f32 v[{g_+2*h_}:{g_+2*h_+1}], v[{g_+2*h_}:{g_+2*h_+1}], v[{u_+2*h_}:{u_+2*h_+1}]")
        for n in range(2):
            e = E + 4 * n
            for h_ in range(2):
                A(f"v_pk_fma_f32 v[{e+2*h_}:{e+2*h_+1}], v[{e+2*h_}:{e+2*h_+1}], v[{GS+4*n}:{GS+4*n+1}], v[{GS+4*n}:{GS+4*n+1}] op_sel:[0,0,0] op_sel_hi:[1,0,0]")
        for n in range(2):
            e = E + 4 * n
            for j in range(4): A(f"v_rcp_f32 v{e+j}, v{e+j}")
        for n in range(2):
            g_ = acc(T, 0, n); e = E + 4 * n
            for h_ in range(2):
                A(f"v_pk_mul_f32 v[{g_+2*h_}:{g_+2*h_+1}], v[{g_+2*h_}:{g_+2*h_+1}], v[{e+2*h_}:{e+2*h_+1}]")
        for n in range(2):
            g_ = acc(T, 0, n)
            for h_ in range(2):
                A(f"v_cvt_pk_bf16_f32 v{o+2*n+h_}, v{g_+2*h_}, v{g_+2*h_+1}")
        A(f"v_permlane16_swap_b32 v{o}, v{o+2}")
        A(f"v_permlane16_swap_b32 v{o+1}, v{o+3}")
        A(f"buffer_store_dwordx4 v[{o}:{o+3}], v2, s[8:11], s24 offen offset:{512*T} sc1"); vm.issue()
    if diag: stamp(A, diag, 3)
    vm.wait_all()
    A("s_barrier")
    if diag: stamp(A, diag, 4)
    A("s_cmp_lg_u32 s12, 0")
    A("s_cbranch_scc1 L_k3_synced")
    A("s_mov_b64 exec, 1")
    A("s_lshl_b32 s24, s13, 10")
    A(f"s_add_u32 s24, s24, {FLAG_OFF}")
    A("v_mov_b32 v2, s24")
    A("v_mov_b32 v3, 1")
    A("global_atomic_add v2, v3, s[4:5] sc1")
    A("s_lshr_b32 s24, s15, 1")
    A("s_lshl_b32 s24, s24, 10")
    A(f"s_add_u32 s24, s24, {FLAG_OFF}")
    A("v_mov_b32 v2, s24")
    A("s_mov_b32 s25, 0")
    A("L_k3_poll:")
    A("global_load_dword v3, v2, s[4:5] sc1")
    A("s_add_u32 s25, s25, 1")
    A("s_waitcnt vmcnt(0)")
    A("v_readfirstlane_b32 s26, v3")
    A("s_cmp_ge_u32 s26, 16")
    A("s_cbranch_scc1 L_k3_polled")
    A("s_cmp_lt_u32 s25, 0x100000")
    A("s_cbranch_scc1 L_k3_poll")
    A("L_k3_polled:")
    A("s_mov_b64 exec, -1")
    A("L_k3_synced:")
    A("s_barrier")
    if diag: stamp(A, diag, 5)
    AC2 = 16
    HV = 80
    slots = [HV + 4 * i for i in range(37)] + [256 + 224 + 4 * i for i in range(8)] + [232 + 4 * i for i in range(6)]
    NS = len(slots)
    for nu in range(4):
        A(f"s_add_u32 s24, s12, {nu}")
        A("s_and_b32 s24, s24, 3")
        A("s_lshl_b32 s25, s15, 2")
        A("s_add_u32 s24, s24, s25")
        A(f"s_mul_i32 s24, s24, {HID_STRIDE}")
        A(f"s_mul_i32 s25, s12, {14*1024}")
        A("s_add_u32 s24, s24, s25")
        A(f"s_add_u32 s{40+nu}, s24, {HID_OFF}")
    def ldH(i):
        P, nu = divmod(i, 4)
        rg = slots[i % NS]
        if P and P % 4 == 0: A(f"s_add_u32 s{40+nu}, s{40+nu}, 4096")
        A(f"buffer_load_dwordx4 {r(rg,4)}, v{VL}, s[8:11], s{40+nu} offen offset:{1024*(P%4)} sc1"); vm.issue(("H", i))
    nld = 48
    for i in range(nld): ldH(i)
    A("v_lshrrev_b32 v2, 4, v1")
    A("v_bfe_u32 v3, v1, 2, 2")
    A("v_lshl_add_u32 v3, v2, 4, v3")
    A("v_lshlrev_b32 v3, 6, v3")
    A("v_and_b32 v4, 3, v1")
    A("v_lshl_add_u32 v3, v4, 3, v3")
    A("s_lshr_b32 s24, s12, 1")
    A("s_lshl_b32 s24, s24, 12")
    A("s_and_b32 s25, s12, 1")
    A("s_lshl_b32 s25, s25, 5")
    A("s_add_u32 s24, s24, s25")
    A(f"s_add_u32 s24, s24, {HTL}")
    A("v_add_u32 v3, s24, v3")
    A("v_xor_b32 v4, 32, v3")
    for rho in range(4):
        A(f"ds_read_b64_tr_b16 v[{8+2*rho}:{9+2*rho}], v{3 if rho < 2 else 4} offset:{256*rho}"); lg.issue("h")
    A("s_lshl_b32 s24, s15, 16")
    A("s_lshl_b32 s25, s12, 14")
    A("s_add_u32 s24, s24, s25")
    A("s_lshl_b32 s25, s16, 7")
    A("s_add_u32 s24, s24, s25")
    A("v_and_b32 v5, 15, v1")
    A("v_lshlrev_b32 v5, 10, v5")
    A("v_lshl_add_u32 v5, v2, 5, v5")
    A("v_add_u32 v5, s24, v5")
    for P in range(14):
        for nu in range(4):
            i = 4 * P + nu
            vm.wait(("H", i))
            for dt in range(4):
                d = AC2 + 16 * nu + 4 * dt
                c = "0" if P == 0 else f"v[{d}:{d+3}]"
                w = 4 * (4 * P + dt)
                A(f"v_mfma_f32_16x16x32_bf16 v[{d}:{d+3}], a[{w}:{w+3}], {r(slots[i % NS],4)}, {c}")
            if nld < 56 and (nld - NS) < i:
                ldH(nld); nld += 1
    if diag: stamp(A, diag, 6)
    for nu in range(1, 4):
        A(f"s_add_u32 s24, s12, {nu}")
        A("s_and_b32 s24, s24, 3")
        A("s_mul_i32 s24, s24, 12288")
        A(f"v_add_u32 v6, s24, v{VL}")
        for dt in range(4):
            d = AC2 + 16 * nu + 4 * dt
            A(f"ds_write_b128 v6, v[{d}:{d+3}] offset:{(nu-1)*4096 + dt*1024}"); lg.issue()
    A("s_mul_i32 s24, s12, 12288")
    A(f"v_add_u32 v6, s24, v{VL}")
    lg.wait_all()
    A("s_barrier")
    for k in range(12):
        A(f"ds_read_b128 v[{80+4*k}:{83+4*k}], v6 offset:{1024*k}"); lg.issue(("R", k))
    for j in range(8):
        A(f"v_lshlrev_b32 v{128+2*j}, 16, v{8+j}")
        A(f"v_and_b32 v{129+2*j}, s38, v{8+j}")
    for k in range(12):
        lg.wait(("R", k))
        d = AC2 + 4 * (k % 4)
        for h_ in range(2):
            A(f"v_pk_add_f32 v[{d+2*h_}:{d+2*h_+1}], v[{d+2*h_}:{d+2*h_+1}], v[{80+4*k+2*h_}:{81+4*k+2*h_}]")
    for r_ in range(4):
        for h_ in range(2):
            j = 2 * r_ + h_
            A(f"v_cvt_pk_bf16_f32 v7, v{AC2+8*h_+r_}, v{AC2+8*h_+4+r_}")
            A(f"v_lshlrev_b32 v32, 16, v7")
            A(f"v_and_b32 v33, s38, v7")
            A(f"v_pk_add_f32 v[32:33], v[32:33], v[{128+2*j}:{129+2*j}]")
            A(f"v_cvt_pk_bf16_f32 v{40+j}, v32, v33")
    A("global_store_dwordx4 v5, v[40:43], s[6:7]")
    A("global_store_dwordx4 v5, v[44:47], s[6:7] offset:16")
    if diag:
        A("s_cmp_lg_u32 s12, 0")
        A("s_cbranch_scc1 L_k3_end")
        stamp(A, diag, 7)
        A("s_waitcnt vmcnt(0)")
        stamp(A, diag, 8)
        stamp_flush(A, diag, 3, 9, 4, 60)
    A("L_k3_end:")
    A("s_endpgm")
    lines = A.finish()
    return [(lines, kernel_desc("k3_kernel", 512, 102, 256), f"; @launch kernel=k3_kernel grid=(256,1,1) block=(256,1,1) lds={K3_LDS}")]
```

```python
UX_STRIDE = 16384 + 256
UX_OFF   = 0
HT_OFF   = 0x480000
HT_STRIDE = 32768 + 256
W13_OFF  = 0x700000
CS_OFF   = 0xB00000
W2_OFF   = 0xC00000
HID_OFF  = 0x1000000
HID_STRIDE = 56 * 1024
FLAG_OFF = 0x1800000
STAMP_OFF = 0x1900000
WS_USED  = 0x1A00000
```

```python
import sys, json
sys.path.insert(0, "gen")
from k1 import gen_k1
from k2 import gen_k2
try:
    from k3 import gen_k3
except ImportError:
    gen_k3 = None

REF = "sequential_preLN__ssm_conv_s4d__glu_gated_swiglu__prompt.s.ref"

def build(opt, path):
    parts = [gen_k1(opt), gen_k2(opt)]
    if gen_k3: parts += gen_k3(opt)
    head = [l.rstrip("\n") for l in open(REF) if l.startswith(";") and "@launch" not in l and "Override" not in l and "grid=ceil" not in l]
    out = head + [p[2] for p in parts]
    out += ['.amdgcn_target "amdgcn-amd-amdhsa--gfx950"', ".text"]
    for i, p in enumerate(parts):
        if i == 1: out.append("L_code_begin:")
        out += [("    " + l if not (l.endswith(":") or l.startswith(".")) else l) for l in p[0]]
    out.append(".p2align 8")
    out.append(".fill 1024, 4, 0xbf800000")
    out.append("L_code_end:")
    for p in parts: out.append(p[1])
    open(path, "w").write("\n".join(out) + "\n")

if __name__ == "__main__":
    path = sys.argv[1]
    opt = json.loads(sys.argv[2]) if len(sys.argv) > 2 else {}
    build(opt, path)
```

```python
from asmlib import *
from layout import *
from k1 import stamp, stamp_flush

SLOT = 45056
CSL3 = 3 * SLOT
HTL  = CSL3 + 14336
K3_LDS = HTL + 8192
LOG2E = 0x3fb8aa3b

class Q:
    def __init__(self, A, name, mx):
        self.A, self.name, self.mx = A, name, mx
        self.n = 0; self.done = 0; self.tag = {}
    def issue(self, tag=None):
        self.n += 1
        if tag is not None: self.tag[tag] = self.n
    def wait(self, tag):
        k = self.tag[tag]
        if k <= self.done: return
        c = min(self.n - k, self.mx)
        self.A(f"s_waitcnt {self.name}({c})")
        self.done = self.n - c
    def wait_all(self):
        if self.done < self.n: self.A(f"s_waitcnt {self.name}(0)")
        self.done = self.n

def gen_k3(opt):
    A = Asm()
    diag = opt.get("diag", False)
    X, G = opt.get("k3_X", 6), opt.get("k3_G", 4)
    RA = 14
    ACC = 0 + 16
    AR  = 128
    BR  = 184
    GS  = 200
    ONES = 216
    VA  = 220
    VB  = 223
    VL  = 229
    TMP = 230
    def acc(T, mat, n): return ACC + 16 * T + 8 * mat + 4 * n
    vm = Q(A, "vmcnt", 63); lg = Q(A, "lgkmcnt", 15)
    A(kernel_header("k3_kernel"))
    A("s_cmp_ge_u32 s2, 256")
    A("s_cbranch_scc1 L_k3_end")
    stamp(A, diag, 0)
    A("s_load_dwordx2 s[4:5], s[0:1], 104")
    A("s_load_dwordx2 s[6:7], s[0:1], 88")
    A("v_lshrrev_b32 v1, 6, v0")
    A("s_and_b32 s20, s2, 7")
    A("v_readfirstlane_b32 s12, v1")
    A("v_and_b32 v1, 63, v0")
    A("s_lshr_b32 s21, s2, 3")
    A("s_lshr_b32 s13, s20, 2")
    A("s_lshl_b32 s13, s13, 3")
    A("s_and_b32 s22, s21, 7")
    A("s_add_u32 s13, s13, s22")
    A("s_and_b32 s14, s20, 3")
    A("s_lshl_b32 s14, s14, 2")
    A("s_lshr_b32 s22, s21, 3")
    A("s_add_u32 s14, s14, s22")
    A("s_lshl_b32 s15, s20, 2")
    A("s_and_b32 s22, s21, 3")
    A("s_add_u32 s15, s15, s22")
    A("s_lshr_b32 s16, s21, 2")
    A(f"v_lshlrev_b32 v{VL}, 4, v1")
    A("s_mul_i32 s17, s14, 229376")
    A("s_mul_i32 s19, s12, 7168")
    A("s_add_u32 s17, s17, s19")
    A(f"s_add_u32 s17, s17, {W13_OFF}")
    A("s_lshl_b32 s18, s13, 2")
    A("s_add_u32 s18, s18, s12")
    A(f"s_mul_i32 s18, s18, {HT_STRIDE}")
    A(f"s_add_u32 s18, s18, {HT_OFF}")
    A("s_lshl_b32 s23, s12, 12")
    A("s_add_u32 s23, s23, 28672")
    A(f"s_mov_b32 s10, {WS_USED}")
    A("s_mov_b32 s11, 0x20000")
    A("s_waitcnt lgkmcnt(0)")
    A("s_mov_b32 s8, s4")
    A("s_mov_b32 s9, s5")
    def dma_ops(st):
        sl = (st % 3) * SLOT
        o = []
        o.append((f"s_add_u32 m0, s23, {sl}", False))
        for k in range(4): o.append((f"buffer_load_dwordx4 v{VL}, s[8:11], s18 offen offset:{1024*k} lds", True))
        o.append((f"s_add_u32 m0, s19, {sl}", False))
        o.append(("s_add_u32 s18, s18, 4096", False))
        for k in range(4): o.append((f"buffer_load_dwordx4 v{VL}, s[8:11], s17 offen offset:{1024*k} lds", True))
        o.append((f"s_add_u32 m0, s19, {sl + 4096}", False))
        o.append(("s_add_u32 s24, s17, 4096", False))
        for k in range(3): o.append((f"buffer_load_dwordx4 v{VL}, s[8:11], s24 offen offset:{1024*k} lds", True))
        o.append(("s_add_u32 s17, s17, 28672", False))
        return o
    def emit(op, tag=None):
        A(op[0])
        if op[1]: vm.issue(tag)
    for st in range(3):
        for op in dma_ops(st): emit(op, ("st", st))
    A("s_min_u32 s24, s12, 2")
    A("s_lshl_b32 s24, s24, 12")
    A("s_cmp_eq_u32 s12, 3")
    A("s_cselect_b32 s24, 10240, s24")
    A(f"s_add_u32 m0, s24, {CSL3}")
    A("s_mul_i32 s25, s14, 14336")
    A("s_add_u32 s25, s25, s24")
    A(f"s_add_u32 s25, s25, {CS_OFF}")
    for k in range(4):
        A(f"buffer_load_dwordx4 v{VL}, s[8:11], s25 offen offset:{1024*k} lds"); vm.issue("aux")
    A("s_lshl_b32 s24, s12, 11")
    A(f"s_add_u32 m0, s24, {HTL}")
    A("s_lshl_b32 s25, s15, 1")
    A("s_lshr_b32 s26, s12, 1")
    A("s_add_u32 s25, s25, s26")
    A(f"s_mul_i32 s25, s25, {HT_STRIDE}")
    A("s_lshl_b32 s26, s16, 12")
    A("s_add_u32 s25, s25, s26")
    A("s_and_b32 s26, s12, 1")
    A("s_lshl_b32 s26, s26, 11")
    A("s_add_u32 s25, s25, s26")
    A(f"s_add_u32 s25, s25, {HT_OFF}")
    for k in range(2):
        A(f"buffer_load_dwordx4 v{VL}, s[8:11], s25 offen offset:{1024*k} lds"); vm.issue("aux")
    for sl in range(3): A(f"v_add_u32 v{VA+sl}, {sl*SLOT}, v{VL}")
    A("v_lshrrev_b32 v2, 4, v1")
    A("v_bfe_u32 v3, v1, 2, 2")
    A("v_lshl_add_u32 v3, v2, 3, v3")
    A("v_lshlrev_b32 v3, 6, v3")
    A("v_and_b32 v4, 3, v1")
    A("v_lshl_add_u32 v3, v4, 3, v3")
    A("v_and_b32 v4, 1, v2")
    A("v_lshl_add_u32 v3, v4, 5, v3")
    A("v_add_u32 v3, s23, v3")
    A("v_xor_b32 v4, 32, v3")
    for sl in range(3):
        A(f"v_add_u32 v{VB+2*sl}, {sl*SLOT}, v3")
        A(f"v_add_u32 v{VB+2*sl+1}, {sl*SLOT}, v4")
    for j in range(4): A(f"v_mov_b32 v{ONES+j}, 0x3f803f80")
    A("v_and_b32 v4, 3, v1")
    A("v_cmp_eq_u32 s[30:31], 1, v4")
    A("v_cmp_eq_u32 s[32:33], 2, v4")
    A("v_cmp_eq_u32 s[34:35], 3, v4")
    A("v_bfe_u32 v4, v1, 2, 2")
    A("v_cmp_eq_u32 s[36:37], v2, v4")
    A("s_mov_b32 s38, 0xffff0000")
    A(f"s_mul_i32 s27, s16, {56*4096}")
    A(f"s_mul_i32 s28, s12, {14*4096}")
    A("s_add_u32 s27, s27, s28")
    A(f"s_add_u32 s27, s27, {W2_OFF}")
    w2ops = []
    for f in range(56):
        w2ops.append((f"buffer_load_dwordx4 a[{4*f}:{4*f+3}], v{VL}, s[8:11], s27 offen offset:{1024*(f%4)}", True))
        if f % 4 == 3: w2ops.append(("s_add_u32 s27, s27, 4096", False))
    NF = 16 * 14
    def rdA(f):
        sg, r_ = divmod(f, 14); st = sg >> 1
        reg = AR + 4 * (f % RA)
        A(f"ds_read_b128 v[{reg}:{reg+3}], v{VA + st % 3} offset:{(r_>>1)*4096 + (sg&1)*2048 + (r_&1)*1024}")
        lg.issue(("A", f))
    def rdB(sg, n, rho):
        st = sg >> 1
        reg = BR + 8 * (sg & 1) + 4 * n + 2 * rho
        A(f"ds_read_b64_tr_b16 v[{reg}:{reg+1}], v{VB + 2*(st % 3) + n} offset:{(sg&1)*2048 + rho*256}")
        lg.issue(("B", sg, n))
    def rdC(f):
        reg = AR + 4 * ((NF + f) % RA)
        A(f"ds_read_b128 v[{reg}:{reg+3}], v{TMP} offset:{1024*f}")
        lg.issue(("A", NF + f))
    A(f"v_add_u32 v{TMP}, {CSL3}, v{VL}")
    side = []
    pend = []
    def stage_open(st):
        lg.wait_all()
        vm.wait(("st", st))
        if st == 3: vm.wait("aux")
        A("s_barrier")
        if st >= 1 and st + 2 < 8:
            side.extend((op, ("st", st + 2)) for op in dma_ops(st + 2))
        if st == 6: side.extend((op, "w2") for op in w2ops)
        for n in range(2):
            for rho in range(2): pend.append((14 * (2 * st - 1), lambda n=n, rho=rho: rdB(2 * st, n, rho)))
        for k in range(28):
            pend.append((0, lambda k=k: rdA(28 * st + k)))
            if k == 8:
                for n in range(2):
                    for rho in range(2): pend.append((14 * (2 * st), lambda n=n, rho=rho: rdB(2 * st + 1, n, rho)))
        if st == 7:
            for k in range(14): pend.append((0, lambda k=k: rdC(k)))
    issuedA = [0]
    def pump(f_cur, maxn):
        k = 0
        while pend and k < maxn:
            nA = sum(1 for t in lg.tag if t[0] == "A")
            if nA - f_cur >= X + G + 1: break
            if pend[0][0] > f_cur: break
            pend.pop(0)[1](); k += 1
    stage_open(0)
    if diag: stamp(A, diag, 1)
    pump(0, 4 + X)
    fin = []
    for f in range(NF):
        sg, r_ = divmod(f, 14); T, mat = divmod(r_, 2)
        if (f + X) % 28 == 0 and f + X < NF:
            assert not pend, (f, len(pend))
            stage_open((f + X) // 28)
        b0 = BR + 8 * (sg & 1)
        if r_ == 0:
            lg.wait(("B", sg, 1))
            for n in range(2):
                c = "0" if sg == 0 else f"v[{GS+4*n}:{GS+4*n+3}]"
                A(f"v_mfma_f32_16x16x32_bf16 v[{GS+4*n}:{GS+4*n+3}], v[{b0+4*n}:{b0+4*n+3}], v[{b0+4*n}:{b0+4*n+3}], {c}")
                c = "0" if sg == 0 else f"v[{GS+8+4*n}:{GS+8+4*n+3}]"
                A(f"v_mfma_f32_16x16x32_bf16 v[{GS+8+4*n}:{GS+8+4*n+3}], v[{ONES}:{ONES+3}], v[{b0+4*n}:{b0+4*n+3}], {c}")
            if sg == 15:
                t = TMP + 2
                for n in range(2):
                    g_ = GS + 4 * n
                    fin += [f"v_cndmask_b32 v{g_}, v{g_}, v{g_+1}, s[30:31]", f"v_cndmask_b32 v{g_}, v{g_}, v{g_+2}, s[32:33]",
                            f"v_cndmask_b32 v{g_}, v{g_}, v{g_+3}, s[34:35]", f"v_cndmask_b32 v{g_}, 0, v{g_}, s[36:37]",
                            f"v_mov_b32 v{g_+1}, v{g_}"]
                fin += [f"v_permlane16_swap_b32 v{GS}, v{GS+1}", f"v_permlane16_swap_b32 v{GS+4}, v{GS+5}",
                        f"v_add_f32 v{GS}, v{GS}, v{GS+1}", f"v_add_f32 v{GS+4}, v{GS+4}, v{GS+5}",
                        f"v_mov_b32 v{GS+1}, v{GS}", f"v_mov_b32 v{GS+5}, v{GS+4}",
                        f"v_mul_f32 v{GS+8}, 0x3b000000, v{GS+8}", f"v_mul_f32 v{GS+12}, 0x3b000000, v{GS+12}",
                        f"v_permlane32_swap_b32 v{GS}, v{GS+1}", f"v_permlane32_swap_b32 v{GS+4}, v{GS+5}",
                        f"v_add_f32 v{GS}, v{GS}, v{GS+1}", f"v_add_f32 v{GS+4}, v{GS+4}, v{GS+5}",
                        f"v_cvt_pk_bf16_f32 v{t}, -v{GS+8}, -v{GS+8}", f"v_cvt_pk_bf16_f32 v{t+4}, -v{GS+12}, -v{GS+12}",
                        f"v_mul_f32 v{GS}, 0x3b000000, v{GS}", f"v_mul_f32 v{GS+4}, 0x3b000000, v{GS+4}"]
                fin += [f"v_mov_b32 v{t+j}, v{t}" for j in (1, 2, 3)] + [f"v_mov_b32 v{t+4+j}, v{t+4}" for j in (1, 2, 3)]
                fin += [f"v_fma_f32 v{GS}, -v{GS+8}, v{GS+8}, v{GS}", f"v_fma_f32 v{GS+4}, -v{GS+12}, v{GS+12}, v{GS+4}",
                        f"v_max_f32 v{GS}, 0, v{GS}", f"v_max_f32 v{GS+4}, 0, v{GS+4}",
                        f"v_cvt_pk_bf16_f32 v{GS+1}, v{GS}, v{GS+4}",
                        f"v_lshlrev_b32 v{GS}, 16, v{GS+1}", f"v_and_b32 v{GS+4}, s38, v{GS+1}",
                        f"v_add_f32 v{GS}, 0x3727c5ac, v{GS}", f"v_add_f32 v{GS+4}, 0x3727c5ac, v{GS+4}",
                        f"v_cvt_pk_bf16_f32 v{GS+1}, v{GS}, v{GS+4}",
                        f"v_lshlrev_b32 v{GS}, 16, v{GS+1}", f"v_and_b32 v{GS+4}, s38, v{GS+1}",
                        f"v_sqrt_f32 v{GS}, v{GS}", f"v_sqrt_f32 v{GS+4}, v{GS+4}",
                        f"v_cvt_pk_bf16_f32 v{GS+1}, v{GS}, v{GS+4}",
                        f"v_lshlrev_b32 v{GS}, 16, v{GS+1}", f"v_and_b32 v{GS+4}, s38, v{GS+1}",
                        f"v_rcp_f32 v{GS+2}, v{GS}", f"v_rcp_f32 v{GS+6}, v{GS+4}",
                        f"v_mul_f32 v{GS}, v{GS}, v{GS}", f"v_mul_f32 v{GS+4}, v{GS+4}, v{GS+4}",
                        f"v_mul_f32 v{GS+2}, {0x80000000 | LOG2E:#x}, v{GS+2}", f"v_mul_f32 v{GS+6}, {0x80000000 | LOG2E:#x}, v{GS+6}"]
        lg.wait(("A", f))
        ar = AR + 4 * (f % RA)
        for n in range(2):
            d = acc(T, mat, n)
            c = "0" if sg == 0 else f"v[{d}:{d+3}]"
            A(f"v_mfma_f32_16x16x32_bf16 v[{d}:{d+3}], v[{ar}:{ar+3}], v[{b0+4*n}:{b0+4*n+3}], {c}")
            pump(f, 1)
            if n == 1:
                k = 0
                while side and k < (2 if sg >= 11 else 1):
                    op, tag = side.pop(0); emit(op, tag)
                    if op[1]: k += 1
            if fin and r_ >= 2:
                for _ in range(2):
                    if fin: A(fin.pop(0))
    assert not side, len(side)
    BX = TMP + 2
    nb = sum(1 for x in fin if f"v{BX}" in x or f"v{BX+4}" in x)
    while any((f"v_mov_b32 v{BX+j}," in x) for x in fin for j in range(8)): A(fin.pop(0))
    for f in range(14):
        T, mat = divmod(f, 2)
        pump(NF + f, 2)
        lg.wait(("A", NF + f))
        ar = AR + 4 * ((NF + f) % RA)
        for n in range(2):
            d = acc(T, mat, n)
            A(f"v_mfma_f32_16x16x32_bf16 v[{d}:{d+3}], v[{ar}:{ar+3}], v[{BX+4*n}:{BX+4*n+3}], v[{d}:{d+3}]")
            if fin: A(fin.pop(0))
    while fin: A(fin.pop(0))
    if diag: stamp(A, diag, 2)
    A("s_lshl_b32 s24, s13, 3")
    A("s_lshl_b32 s25, s12, 1")
    A("s_add_u32 s24, s24, s25")
    A(f"s_mul_i32 s24, s24, {HID_STRIDE}")
    A(f"s_mul_i32 s25, s14, {7*512}")
    A("s_add_u32 s24, s24, s25")
    A(f"s_add_u32 s24, s24, {HID_OFF}")
    A("v_bfe_u32 v2, v1, 4, 1")
    A(f"v_mul_u32_u24 v2, {HID_STRIDE}, v2")
    A("v_lshrrev_b32 v3, 5, v1")
    A("v_lshl_add_u32 v2, v3, 8, v2")
    A("v_and_b32 v3, 15, v1")
    A("v_lshl_add_u32 v2, v3, 4, v2")
    E = AR
    for T in range(7):
        o = E + 32 + 4 * (T & 1)
        for n in range(2):
            g_, u_ = acc(T, 0, n), acc(T, 1, n); e = E + 4 * n
            for h_ in range(2):
                A(f"v_pk_mul_f32 v[{e+2*h_}:{e+2*h_+1}], v[{g_+2*h_}:{g_+2*h_+1}], v[{GS+4*n+2}:{GS+4*n+3}] op_sel:[0,0] op_sel_hi:[1,0]")
        for n in range(2):
            g_, u_ = acc(T, 0, n), acc(T, 1, n); e = E + 4 * n
            for j in range(4): A(f"v_exp_f32 v{e+j}, v{e+j}")
            for h_ in range(2):
                A(f"v_pk_mul_f32 v[{g_+2*h_}:{g_+2*h_+1}], v[{g_+2*h_}:{g_+2*h_+1}], v[{u_+2*h_}:{u_+2*h_+1}]")
        for n in range(2):
            e = E + 4 * n
            for h_ in range(2):
                A(f"v_pk_fma_f32 v[{e+2*h_}:{e+2*h_+1}], v[{e+2*h_}:{e+2*h_+1}], v[{GS+4*n}:{GS+4*n+1}], v[{GS+4*n}:{GS+4*n+1}] op_sel:[0,0,0] op_sel_hi:[1,0,0]")
        for n in range(2):
            e = E + 4 * n
            for j in range(4): A(f"v_rcp_f32 v{e+j}, v{e+j}")
        for n in range(2):
            g_ = acc(T, 0, n); e = E + 4 * n
            for h_ in range(2):
                A(f"v_pk_mul_f32 v[{g_+2*h_}:{g_+2*h_+1}], v[{g_+2*h_}:{g_+2*h_+1}], v[{e+2*h_}:{e+2*h_+1}]")
        for n in range(2):
            g_ = acc(T, 0, n)
            for h_ in range(2):
                A(f"v_cvt_pk_bf16_f32 v{o+2*n+h_}, v{g_+2*h_}, v{g_+2*h_+1}")
        A(f"v_permlane16_swap_b32 v{o}, v{o+2}")
        A(f"v_permlane16_swap_b32 v{o+1}, v{o+3}")
        A(f"buffer_store_dwordx4 v[{o}:{o+3}], v2, s[8:11], s24 offen offset:{512*T} sc1"); vm.issue()
    if diag: stamp(A, diag, 3)
    vm.wait_all()
    A("s_barrier")
    if diag: stamp(A, diag, 4)
    A("s_cmp_lg_u32 s12, 0")
    A("s_cbranch_scc1 L_k3_synced")
    A("s_mov_b64 exec, 1")
    A("s_lshl_b32 s24, s13, 10")
    A(f"s_add_u32 s24, s24, {FLAG_OFF}")
    A("v_mov_b32 v2, s24")
    A("v_mov_b32 v3, 1")
    A("global_atomic_add v2, v3, s[4:5] sc1")
    A("s_lshr_b32 s24, s15, 1")
    A("s_lshl_b32 s24, s24, 10")
    A(f"s_add_u32 s24, s24, {FLAG_OFF}")
    A("v_mov_b32 v2, s24")
    A("s_mov_b32 s25, 0")
    A("L_k3_poll:")
    A("global_load_dword v3, v2, s[4:5] sc1")
    A("s_add_u32 s25, s25, 1")
    A("s_waitcnt vmcnt(0)")
    A("v_readfirstlane_b32 s26, v3")
    A("s_cmp_ge_u32 s26, 16")
    A("s_cbranch_scc1 L_k3_polled")
    A("s_cmp_lt_u32 s25, 0x100000")
    A("s_cbranch_scc1 L_k3_poll")
    A("L_k3_polled:")
    A("s_mov_b64 exec, -1")
    A("L_k3_synced:")
    A("s_barrier")
    if diag: stamp(A, diag, 5)
    AC2 = 16
    HV = 80
    slots = [HV + 4 * i for i in range(37)] + [256 + 224 + 4 * i for i in range(8)] + [232 + 4 * i for i in range(6)]
    NS = len(slots)
    for nu in range(4):
        A(f"s_add_u32 s24, s12, {nu}")
        A("s_and_b32 s24, s24, 3")
        A("s_lshl_b32 s25, s15, 2")
        A("s_add_u32 s24, s24, s25")
        A(f"s_mul_i32 s24, s24, {HID_STRIDE}")
        A(f"s_mul_i32 s25, s12, {14*1024}")
        A("s_add_u32 s24, s24, s25")
        A(f"s_add_u32 s{40+nu}, s24, {HID_OFF}")
    def ldH(i):
        P, nu = divmod(i, 4)
        rg = slots[i % NS]
        if P and P % 4 == 0: A(f"s_add_u32 s{40+nu}, s{40+nu}, 4096")
        A(f"buffer_load_dwordx4 {r(rg,4)}, v{VL}, s[8:11], s{40+nu} offen offset:{1024*(P%4)} sc1"); vm.issue(("H", i))
    nld = 48
    for i in range(nld): ldH(i)
    A("v_lshrrev_b32 v2, 4, v1")
    A("v_bfe_u32 v3, v1, 2, 2")
    A("v_lshl_add_u32 v3, v2, 4, v3")
    A("v_lshlrev_b32 v3, 6, v3")
    A("v_and_b32 v4, 3, v1")
    A("v_lshl_add_u32 v3, v4, 3, v3")
    A("s_lshr_b32 s24, s12, 1")
    A("s_lshl_b32 s24, s24, 12")
    A("s_and_b32 s25, s12, 1")
    A("s_lshl_b32 s25, s25, 5")
    A("s_add_u32 s24, s24, s25")
    A(f"s_add_u32 s24, s24, {HTL}")
    A("v_add_u32 v3, s24, v3")
    A("v_xor_b32 v4, 32, v3")
    for rho in range(4):
        A(f"ds_read_b64_tr_b16 v[{8+2*rho}:{9+2*rho}], v{3 if rho < 2 else 4} offset:{256*rho}"); lg.issue("h")
    A("s_lshl_b32 s24, s15, 16")
    A("s_lshl_b32 s25, s12, 14")
    A("s_add_u32 s24, s24, s25")
    A("s_lshl_b32 s25, s16, 7")
    A("s_add_u32 s24, s24, s25")
    A("v_and_b32 v5, 15, v1")
    A("v_lshlrev_b32 v5, 10, v5")
    A("v_lshl_add_u32 v5, v2, 5, v5")
    A("v_add_u32 v5, s24, v5")
    for P in range(14):
        for nu in range(4):
            i = 4 * P + nu
            vm.wait(("H", i))
            for dt in range(4):
                d = AC2 + 16 * nu + 4 * dt
                c = "0" if P == 0 else f"v[{d}:{d+3}]"
                w = 4 * (4 * P + dt)
                A(f"v_mfma_f32_16x16x32_bf16 v[{d}:{d+3}], a[{w}:{w+3}], {r(slots[i % NS],4)}, {c}")
            if nld < 56 and (nld - NS) < i:
                ldH(nld); nld += 1
    if diag: stamp(A, diag, 6)
    for nu in range(1, 4):
        A(f"s_add_u32 s24, s12, {nu}")
        A("s_and_b32 s24, s24, 3")
        A("s_mul_i32 s24, s24, 12288")
        A(f"v_add_u32 v6, s24, v{VL}")
        for dt in range(4):
            d = AC2 + 16 * nu + 4 * dt
            A(f"ds_write_b128 v6, v[{d}:{d+3}] offset:{(nu-1)*4096 + dt*1024}"); lg.issue()
    A("s_mul_i32 s24, s12, 12288")
    A(f"v_add_u32 v6, s24, v{VL}")
    lg.wait_all()
    A("s_barrier")
    for k in range(12):
        A(f"ds_read_b128 v[{80+4*k}:{83+4*k}], v6 offset:{1024*k}"); lg.issue(("R", k))
    for j in range(8):
        A(f"v_lshlrev_b32 v{128+2*j}, 16, v{8+j}")
        A(f"v_and_b32 v{129+2*j}, s38, v{8+j}")
    for k in range(12):
        lg.wait(("R", k))
        d = AC2 + 4 * (k % 4)
        for h_ in range(2):
            A(f"v_pk_add_f32 v[{d+2*h_}:{d+2*h_+1}], v[{d+2*h_}:{d+2*h_+1}], v[{80+4*k+2*h_}:{81+4*k+2*h_}]")
    for r_ in range(4):
        for h_ in range(2):
            j = 2 * r_ + h_
            A(f"v_cvt_pk_bf16_f32 v7, v{AC2+8*h_+r_}, v{AC2+8*h_+4+r_}")
            A(f"v_lshlrev_b32 v32, 16, v7")
            A(f"v_and_b32 v33, s38, v7")
            A(f"v_pk_add_f32 v[32:33], v[32:33], v[{128+2*j}:{129+2*j}]")
            if opt.get("perturb") and j == 0:
                A("v_cmp_eq_u32 vcc, 0, v5")
                A(f"v_mov_b32 v34, {float(opt['perturb'])!r}")
                A("v_cndmask_b32 v34, 0, v34, vcc")
                A("v_add_f32 v32, v32, v34")
            A(f"v_cvt_pk_bf16_f32 v{40+j}, v32, v33")
    A("global_store_dwordx4 v5, v[40:43], s[6:7]")
    A("global_store_dwordx4 v5, v[44:47], s[6:7] offset:16")
    if diag:
        A("s_cmp_lg_u32 s12, 0")
        A("s_cbranch_scc1 L_k3_end")
        stamp(A, diag, 7)
        A("s_waitcnt vmcnt(0)")
        stamp(A, diag, 8)
        stamp_flush(A, diag, 3, 9, 4, 60)
    A("L_k3_end:")
    A("s_endpgm")
    lines = A.finish()
    return [(lines, kernel_desc("k3_kernel", 512, 102, 256), f"; @launch kernel=k3_kernel grid=(256,1,1) block=(256,1,1) lds={K3_LDS}")]
```

```python
import sys, json
sys.path.insert(0, "gen")
from k1 import gen_k1
from k2 import gen_k2
try:
    from k3 import gen_k3
except ImportError:
    gen_k3 = None

REF = "sequential_preLN__ssm_conv_s4d__glu_gated_swiglu__prompt.s.ref"

def build(opt, path):
    parts = [gen_k1(opt), gen_k2(opt)]
    if gen_k3: parts += gen_k3(opt)
    head = [l.rstrip("\n") for l in open(REF) if l.startswith(";") and "@launch" not in l and "Override" not in l and "grid=ceil" not in l]
    from asmlib import kernel_header, kernel_desc
    nop = "; @launch kernel=nop_kernel grid=(256,1,1) block=(64,1,1) lds=0"
    out = head + [nop] * opt.get("nop_pre", 0) + [p[2] for p in parts] + [nop] * opt.get("nop_post", 0)
    if opt.get("nop_pre", 0) or opt.get("nop_post", 0):
        parts = parts + [(kernel_header("nop_kernel").split("\n") + ["s_endpgm"], kernel_desc("nop_kernel", 8, 16, 8), None)]
    out += ['.amdgcn_target "amdgcn-amd-amdhsa--gfx950"', ".text"]
    for i, p in enumerate(parts):
        if i == 1: out.append("L_code_begin:")
        out += [("    " + l if not (l.endswith(":") or l.startswith(".")) else l) for l in p[0]]
    out.append(".p2align 8")
    out.append(".fill 1024, 4, 0xbf800000")
    out.append("L_code_end:")
    for p in parts: out.append(p[1])
    open(path, "w").write("\n".join(out) + "\n")

if __name__ == "__main__":
    path = sys.argv[1]
    opt = json.loads(sys.argv[2]) if len(sys.argv) > 2 else {}
    build(opt, path)
```

```python
from asmlib import *
from layout import *

LOG2E = 0x3fb8aa3b
INV2PI = 0x3e22f983
KC1 = 65536
KC_CH = 1536
K1_LDS = KC1 + 2 * KC_CH

def stamp(A, on, slot, sreg=70):
    if on == "cyc": A(f"s_memtime s[{sreg+2*slot}:{sreg+2*slot+1}]")
    elif on: A(f"s_memrealtime s[{sreg+2*slot}:{sreg+2*slot+1}]")

def stamp_flush(A, on, kid, nslots, ws, vtmp, sreg=70, wave_sreg=None):
    if not on: return
    A("s_waitcnt lgkmcnt(0)")
    A(f"s_lshl_b32 s69, s2, 6")
    A(f"s_add_u32 s69, s69, {STAMP_OFF + kid * 16384}")
    if wave_sreg is not None:
        A(f"s_lshr_b32 s68, s{wave_sreg}, 2")
        A(f"s_lshl_b32 s68, s68, 14")
        A(f"s_add_u32 s69, s69, s68")
    A(f"v_mov_b32 v{vtmp}, s69")
    for i in range(nslots):
        A(f"v_mov_b32 v{vtmp+1}, s{sreg+2*i}")
        A(f"global_store_dword v{vtmp}, v{vtmp+1}, s[{ws}:{ws+1}] offset:{4*i}")

def cmul(A, d, x, y, t):
    A(f"v_pk_mul_f32 v[{t}:{t+1}], v[{x}:{x+1}], v[{y}:{y+1}] op_sel:[0,0] op_sel_hi:[1,0]")
    A(f"v_pk_fma_f32 v[{d}:{d+1}], v[{x}:{x+1}], v[{y}:{y+1}], v[{t}:{t+1}] op_sel:[1,1,0] op_sel_hi:[0,1,1] neg_lo:[1,0,0]")

def pc_addr(A, label, here, vlo, voff, s0=26):
    A(f"s_getpc_b64 s[{s0}:{s0+1}]")
    A(f"{here}:")
    A(f"s_add_u32 s{s0}, s{s0}, {label}-{here}")
    A(f"s_addc_u32 s{s0+1}, s{s0+1}, 0")
    A(f"v_mov_b32 v{vlo+1}, s{s0+1}")
    A(f"v_add_co_u32 v{vlo}, vcc, s{s0}, v{voff}")
    A(f"v_addc_co_u32 v{vlo+1}, vcc, 0, v{vlo+1}, vcc")

def gen_kgen(A, opt):
    diag = opt.get("diag", False)
    st = opt.get("k1_kstore", "")
    SC, TA, TB = 116, 100, 104
    IX = 106
    A("s_load_dwordx2 s[4:5], s[0:1], 104")
    A("s_load_dwordx8 s[8:15], s[0:1], 8")
    A("s_load_dwordx2 s[16:17], s[0:1], 40")
    A("v_lshrrev_b32 v1, 6, v0")
    A("s_and_b32 s27, s2, 7")
    A("v_readfirstlane_b32 s30, v1")
    A("v_and_b32 v1, 63, v0")
    A("s_lshl_b32 s27, s27, 5")
    A("s_lshr_b32 s28, s2, 3")
    A("s_add_u32 s29, s27, s28")
    A("s_lshl_b32 s28, s29, 9")
    A("v_lshl_add_u32 v6, v0, 1, s28")
    A("s_lshl_b32 s28, s29, 2")
    A("v_lshrrev_b32 v7, 7, v0")
    A("v_lshl_add_u32 v7, v7, 1, s28")
    A("v_min_u32 v8, 203, v0")
    A("v_lshlrev_b32 v8, 4, v8")
    pc_addr(A, "L_ridx", "L_k1_pc0", 10, 8)
    A("s_mov_b32 s36, 0xffff0000")
    A("s_waitcnt lgkmcnt(0)")
    for k in range(4):
        A(f"global_load_ushort v{2+k}, v6, s[{8+2*k}:{9+2*k}]")
    A("global_load_ushort v6, v7, s[16:17]")
    A(f"global_load_dwordx4 v[{IX}:{IX+3}], v[10:11], off")
    T0, T1, T2, T3 = 90, 91, 92, 93
    A("s_lshr_b32 s51, s30, 1")
    A("s_and_b32 s52, s30, 1")
    A(f"v_mov_b32 v{T0}, {KC1}")
    A(f"v_mov_b32 v{T1}, 0")
    A(f"ds_write_b32 v{T0}, v{T1}")
    A(f"ds_write_b32 v{T0}, v{T1} offset:{KC_CH}")
    A(f"v_bfe_u32 v{T0}, v0, 1, 2")
    A(f"v_bfe_u32 v{T1}, v0, 3, 1")
    A(f"v_lshlrev_b32 v{T1}, 1, v{T1}")
    A(f"v_xor_b32 v{T0}, v{T0}, v{T1}")
    A(f"v_and_b32 v{T1}, 127, v0")
    A(f"v_lshlrev_b32 v{T1}, 6, v{T1}")
    A(f"v_lshl_add_u32 v{T1}, v{T0}, 4, v{T1}")
    A("s_lshl_b32 s53, s51, 15")
    A(f"v_add_u32 v110, s53, v{T1}")
    for c in range(1, 4): A(f"v_xor_b32 v{110+c}, {16*c}, v110")
    A(f"v_lshrrev_b32 v{T0}, 4, v1")
    A(f"v_bfe_u32 v{T1}, v1, 2, 2")
    A(f"v_lshl_add_u32 v{T1}, v{T0}, 3, v{T1}")
    A(f"v_lshlrev_b32 v{T1}, 6, v{T1}")
    A(f"v_bfe_u32 v{T2}, v1, 1, 1")
    A(f"v_bfe_u32 v{T3}, v1, 3, 2")
    A(f"v_xor_b32 v{T2}, v{T2}, v{T3}")
    A(f"v_lshl_add_u32 v{T1}, v{T2}, 4, v{T1}")
    A(f"v_and_b32 v{T2}, 1, v1")
    A(f"v_lshl_add_u32 v{T1}, v{T2}, 3, v{T1}")
    A(f"v_add_u32 v{T1}, s53, v{T1}")
    A(f"v_xor_b32 v{TA+1}, 32, v{T1}")
    A(f"v_mov_b32 v{TA}, v{T1}")
    A("s_lshl_b32 s54, s52, 5")
    A(f"v_xor_b32 v{TB}, s54, v{T1}")
    A(f"v_xor_b32 v{TB+1}, 32, v{TB}")
    A(f"v_and_b32 v{T1}, 15, v1")
    A("s_lshl_b32 s54, s52, 4")
    A(f"v_add_u32 v{T1}, s54, v{T1}")
    A(f"v_or_b32 v{T3}, 0x0c0c0c00, v{T0}")
    A(f"s_mul_i32 s53, s51, {KC_CH}")
    A(f"s_add_u32 s53, s53, {KC1 + 16}")
    tabs = {0: dict(base=[0, 4, 256, 384], shb=[3, 3, 2, 1], o=[[1, 1, 1, 1], [2, 2, 2, 64], [3, 3, 3, 65]]),
            1: dict(base=[512, 640, 680, 680], shb=[0, 0, 0, 0], o=[[32, 40, 0, 0], [64, 40, 0, 0], [96, 40, 0, 0]])}
    def lut(vals, dst, scale=1):
        lo = sum((vals[i] // scale) << (8 * i) for i in range(4))
        A(f"s_mov_b32 s54, {lo:#x}")
        A(f"v_perm_b32 v{dst}, v{dst}, s54, v{T3}")
    for rh in range(2):
        tb = tabs[rh]; sc = SC + 4 * rh
        if rh == 0:
            lut(tb["shb"], 94); A(f"v_lshlrev_b32 v95, v94, v{T1}")
        else: A(f"v_mov_b32 v95, v{T1}")
        lut(tb["base"], 94, 4)
        A(f"v_lshl_add_u32 v95, v94, 2, v95")
        A(f"v_lshl_add_u32 v{sc}, v95, 1, s53")
        for i in range(3):
            if rh == 0 and i == 0: A(f"v_add_u32 v{sc+1}, 2, v{sc}")
            else:
                lut(tb["o"][i], 94); A(f"v_lshl_add_u32 v{sc+1+i}, v94, 1, v{sc}")
    A(f"s_mov_b32 s43, {LOG2E:#x}")
    stamp(A, diag, 1)
    A("s_waitcnt vmcnt(1)")
    stamp(A, diag, 2)
    for k in (0, 4, 1, 2, 3): A(f"v_lshlrev_b32 v{2+k}, 16, v{2+k}")
    A("v_mul_f32 v2, s43, v2")
    A("v_mul_f32 v6, s43, v6")
    A("v_exp_f32 v2, v2")
    A("v_exp_f32 v6, v6")
    A("v_cvt_pk_bf16_f32 v2, v2, v6")
    A("v_and_b32 v6, s36, v2")
    A("v_lshlrev_b32 v2, 16, v2")
    A("v_mul_f32 v2, v2, v6")
    A("v_mul_f32 v3, v3, v6")
    A("v_mul_f32 v2, -v2, s43")
    A(f"v_mul_f32 v3, {INV2PI:#x}, v3")
    A("v_add_f32 v6, v6, v6")
    H = 20
    A(f"v_mul_f32 v{H}, v4, v6")
    A(f"v_mul_f32 v{H+1}, v5, v6")
    E1, E8, E256, E16 = 8, 10, 12, 14
    for p, e in ((8.0, E8), (1.0, E1), (256.0, E256)):
        if p == 1.0:
            A(f"v_exp_f32 v16, v2")
            A(f"v_fract_f32 v17, v3")
        else:
            A(f"v_mul_f32 v16, {p!r}, v2")
            A(f"v_mul_f32 v17, {p!r}, v3")
            A(f"v_exp_f32 v16, v16")
            A(f"v_fract_f32 v17, v17")
        A(f"v_cos_f32 v{e}, v17")
        A(f"v_sin_f32 v{e+1}, v17")
        A(f"v_pk_mul_f32 v[{e}:{e+1}], v[{e}:{e+1}], v[16:17] op_sel:[0,0] op_sel_hi:[1,0]")
    cmul(A, E16, E8, E8, 16)
    P0, P1, TP = 62, E8, 66
    RE, IM = 72, 76
    Lops, Hops = [], []
    def rec(lst):
        B = Asm(); lst.append(B); return B
    for k in range(16):
        B = rec(Lops)
        grp, j = divmod(k, 4)
        o = 8 * (grp & 1)
        if k == 0:
            B(f"v_cvt_pk_bf16_f32 v{RE}, 1.0, v{P1}")
            B(f"v_cvt_pk_bf16_f32 v{IM}, 0, v{P1+1}")
            cmul(B, P1, P1, E16, TP + 2)
            continue
        p0 = E16 if k == 1 else P0
        B(f"v_cvt_pk_bf16_f32 v{RE+o+j}, v{p0}, v{P1}")
        B(f"v_cvt_pk_bf16_f32 v{IM+o+j}, v{p0+1}, v{P1+1}")
        if k < 15:
            B(f"v_pk_mul_f32 v[{TP}:{TP+1}], v[{p0}:{p0+1}], v[{E16}:{E16+1}] op_sel:[0,0] op_sel_hi:[1,0]")
            B(f"v_pk_mul_f32 v[{TP+2}:{TP+3}], v[{P1}:{P1+1}], v[{E16}:{E16+1}] op_sel:[0,0] op_sel_hi:[1,0]")
            B(f"v_pk_fma_f32 v[{P0}:{P0+1}], v[{p0}:{p0+1}], v[{E16}:{E16+1}], v[{TP}:{TP+1}] op_sel:[1,1,0] op_sel_hi:[0,1,1] neg_lo:[1,0,0]")
            B(f"v_pk_fma_f32 v[{P1}:{P1+1}], v[{P1}:{P1+1}], v[{E16}:{E16+1}], v[{TP+2}:{TP+3}] op_sel:[1,1,0] op_sel_hi:[0,1,1] neg_lo:[1,0,0]")
        if j == 3:
            B(f"ds_write_b128 v{110+grp}, v[{RE+o}:{RE+o+3}]")
            B(f"ds_write_b128 v{110+grp}, v[{IM+o}:{IM+o+3}] offset:8192")
    src = {1: (0, E1), 2: (1, E1), 3: (2, E1), 4: (3, E1), 5: (4, E1), 6: (5, E1), 7: (6, E1),
           8: (0, E256), 9: (2, E256), 10: (4, E256), 11: (6, E256), 12: (8, E256), 13: (10, E256), 14: (12, E256), 15: (13, E256),
           16: (14, E256), 17: (16, E256), 18: (17, E256), 19: (18, E256), 20: (19, E256)}
    HR, HI = 124, 128
    for i in range(1, 21):
        B = rec(Hops)
        cmul(B, H + 2 * i, H + 2 * src[i][0], src[i][1], TP + 4)
        if i % 2 == 1 or i == 20:
            lo = i - 1 if i % 2 == 1 else i
            j = (lo // 2) % 4; grp = lo // 8
            o = 8 * (grp & 1)
            B(f"v_cvt_pk_bf16_f32 v{HR+o+j}, v{H+2*lo}, v{H+2*i}")
            B(f"v_cvt_pk_bf16_f32 v{HI+o+j}, -v{H+2*lo+1}, -v{H+2*i+1}")
            if j == 3 or i == 20:
                B(f"ds_write_b128 v{110+grp}, v[{HR+o}:{HR+o+3}] offset:16384")
                B(f"ds_write_b128 v{110+grp}, v[{HI+o}:{HI+o+3}] offset:24576")
    li = hi_ = 0
    while li < len(Lops) or hi_ < len(Hops):
        if hi_ < len(Hops): A.lines += Hops[hi_].lines; hi_ += 1
        if li < len(Lops): A.lines += Lops[li].lines; li += 1
        if hi_ < len(Hops) and li % 4 == 0: A.lines += Hops[hi_].lines; hi_ += 1
    A("s_waitcnt lgkmcnt(0)")
    stamp(A, diag, 3)
    A("s_barrier")
    def rd(kk):
        f = 2 + 12 * (kk % 4)
        for rho in range(2):
            A(f"ds_read_b64_tr_b16 v[{f+2*rho}:{f+2*rho+1}], v{TB+rho} offset:{2048*kk+256*rho}")
        for rh in range(2):
            for rho in range(2):
                A(f"ds_read_b64_tr_b16 v[{f+4+4*rh+2*rho}:{f+5+4*rh+2*rho}], v{TA+(rh^rho)} offset:{16384+2048*kk+256*rho}")
    rd(0); rd(1)
    for kk in range(8):
        f = 2 + 12 * (kk % 4)
        if kk + 2 < 8:
            rd(kk + 2); A("s_waitcnt lgkmcnt(12)")
        else: A(f"s_waitcnt lgkmcnt({6 if kk == 6 else 0})")
        for rh in range(2):
            A(f"v_mfma_f32_16x16x32_bf16 v[{52+4*rh}:{55+4*rh}], v[{f+4+4*rh}:{f+7+4*rh}], v[{f}:{f+3}], {'0' if kk == 0 else 'v[%d:%d]' % (52+4*rh, 55+4*rh)}")
    A("s_waitcnt vmcnt(0)")
    for j in range(4):
        A(f"v_and_b32 v{64+2*j}, 0xffff, v{IX+j}")
        A(f"v_lshrrev_b32 v{65+2*j}, 16, v{IX+j}")
    for j in range(8): A(f"v_add_u32 v{64+j}, {KC1}, v{64+j}")
    for rh in range(2):
        A(f"v_cvt_pk_bf16_f32 v60, v{52+4*rh}, v{53+4*rh}")
        A(f"v_cvt_pk_bf16_f32 v61, v{54+4*rh}, v{55+4*rh}")
        A(f"ds_write_b16 v{SC+4*rh}, v60")
        A(f"ds_write_b16_d16_hi v{SC+4*rh+1}, v60")
        A(f"ds_write_b16 v{SC+4*rh+2}, v61")
        A(f"ds_write_b16_d16_hi v{SC+4*rh+3}, v61")
    A(f"s_mul_i32 s53, s2, {KR_STRIDE}")
    A(f"s_add_u32 s53, s53, {KR_OFF}")
    A("v_min_u32 v8, 203, v0")
    A("v_lshl_add_u32 v8, v8, 4, s53")
    A("s_waitcnt lgkmcnt(0)")
    A("s_barrier")
    stamp(A, diag, 4)
    for ch in range(2):
        for j in range(8):
            A(f"ds_read_u16 v{10+8*ch+j}, v{64+j} offset:{KC_CH*ch}")
    for ch in range(2):
        A(f"s_waitcnt lgkmcnt({8 if ch == 0 else 0})")
        for j in range(4):
            A(f"v_lshl_or_b32 v{28+4*ch+j}, v{11+8*ch+2*j}, 16, v{10+8*ch+2*j}")
        A(f"global_store_dwordx4 v8, v[{28+4*ch}:{31+4*ch}], s[4:5] offset:{KR_CH*ch} {st}")
    if diag:
        stamp(A, diag, 5)
        A("s_waitcnt vmcnt(0)")
        stamp(A, diag, 6)
        stamp_flush(A, diag, 0, 7, 4, 60)
    A("s_endpgm")

def gen_k1(opt):
    A = Asm()
    diag = opt.get("diag", False)
    st = opt.get("k1_store", "")
    A(kernel_header("k1_kernel"))
    stamp(A, diag, 0)
    if opt.get("k1_selfpf", True):
        A("v_lshlrev_b32 v96, 5, v0")
        pc_addr(A, "L_k1_pf", "L_k1_pf", 98, 96)
        A("global_load_dword v97, v[98:99], off")
    A("s_cmp_ge_u32 s2, 256")
    A("s_cbranch_scc1 L_k1_ln")
    gen_kgen(A, opt)
    A("L_k1_ln:")
    A("s_cmp_ge_u32 s2, 512")
    A("s_cbranch_scc1 L_k1_end")
    A("s_load_dwordx2 s[4:5], s[0:1], 0")
    A("s_load_dwordx2 s[6:7], s[0:1], 104")
    A("s_load_dwordx2 s[18:19], s[0:1], 48")
    A("s_sub_u32 s12, s2, 256")
    A("s_lshl_b32 s3, s12, 13")
    A("v_lshrrev_b32 v1, 6, v0")
    A("v_and_b32 v2, 63, v0")
    A("v_lshlrev_b32 v3, 11, v1")
    A("v_lshl_add_u32 v3, v2, 4, v3")
    A("v_add_u32 v3, s3, v3")
    A("v_lshl_add_u32 v4, v0, 2, s3")
    A("v_add_u32 v5, 4096, v4")
    A("s_mov_b32 s20, 0x3f803f80")
    A("s_mov_b32 s21, 0xffff0000")
    A("s_mov_b32 s22, 0x05040100")
    A("s_mov_b32 s23, 0x07060302")
    A("s_waitcnt lgkmcnt(0)")
    A("global_load_dwordx4 v[8:11], v3, s[4:5]")
    A("global_load_dwordx4 v[12:15], v3, s[4:5] offset:1024")
    for r_ in range(8):
        A(f"global_load_dword v{16+r_}, v{4 if r_ < 4 else 5}, s[4:5] offset:{(r_ % 4) * 1024}")
    nlater = 0
    if opt.get("k1_prefetch", True):
        A("v_lshlrev_b32 v7, 2, v0")
        A("global_load_dword v69, v7, s[18:19]")
        A("s_lshr_b32 s28, s12, 3")
        A("s_lshl_b32 s28, s28, 12")
        A("s_min_u32 s28, s28, L_code_end-L_code_begin-4096")
        A("v_lshl_add_u32 v68, v0, 4, s28")
        pc_addr(A, "L_code_begin", "L_k1_pc", 70, 68)
        A("global_load_dwordx4 v[72:75], v[70:71], off")
        nlater += 2
    A("s_cmp_ge_u32 s12, 16")
    A("s_cbranch_scc1 L_k1_nz")
    A("s_lshl_b32 s24, s12, 10")
    A(f"s_add_u32 s24, s24, {FLAG_OFF}")
    A("v_lshl_add_u32 v76, v0, 2, s24")
    A("v_mov_b32 v77, 0")
    A("global_store_dword v76, v77, s[6:7]")
    A("s_waitcnt vmcnt(0)")
    A("L_k1_nz:")
    A(f"s_waitcnt vmcnt({8 + nlater})")
    stamp(A, diag, 1)
    A("v_dot2_f32_bf16 v24, v8, s20, 0")
    A("v_dot2_f32_bf16 v25, v12, s20, 0")
    A("v_dot2_f32_bf16 v26, v8, v8, 0")
    A("v_dot2_f32_bf16 v27, v12, v12, 0")
    for j in range(1, 4):
        A(f"v_dot2_f32_bf16 v24, v{8+j}, s20, v24")
        A(f"v_dot2_f32_bf16 v25, v{12+j}, s20, v25")
        A(f"v_dot2_f32_bf16 v26, v{8+j}, v{8+j}, v26")
        A(f"v_dot2_f32_bf16 v27, v{12+j}, v{12+j}, v27")
    for mod in ("row_shr:1 row_mask:0xf", "row_shr:2 row_mask:0xf", "row_shr:4 row_mask:0xf", "row_shr:8 row_mask:0xf",
                "row_bcast:15 row_mask:0xa", "row_bcast:31 row_mask:0xc"):
        for k in range(4):
            A(f"v_add_f32_dpp v{24+k}, v{24+k}, v{24+k} {mod} bank_mask:0xf")
    A("s_mov_b32 s24, 0x3b000000")
    for k in range(4): A(f"v_mul_f32 v{24+k}, s24, v{24+k}")
    A("v_fma_f32 v26, -v24, v24, v26")
    A("v_fma_f32 v27, -v25, v25, v27")
    A("v_max_f32 v26, 0, v26")
    A("v_max_f32 v27, 0, v27")
    A("v_cvt_pk_bf16_f32 v28, v24, v25")
    A("v_cvt_pk_bf16_f32 v29, v26, v27")
    A("v_lshlrev_b32 v24, 16, v28")
    A("v_and_b32 v25, s21, v28")
    A("v_lshlrev_b32 v26, 16, v29")
    A("v_and_b32 v27, s21, v29")
    A("v_add_f32 v26, 0x3727c5ac, v26")
    A("v_add_f32 v27, 0x3727c5ac, v27")
    A("v_cvt_pk_bf16_f32 v29, v26, v27")
    A("v_lshlrev_b32 v26, 16, v29")
    A("v_and_b32 v27, s21, v29")
    A("v_sqrt_f32 v26, v26")
    A("v_sqrt_f32 v27, v27")
    A("v_cvt_pk_bf16_f32 v29, v26, v27")
    A("v_lshlrev_b32 v26, 16, v29")
    A("v_and_b32 v27, s21, v29")
    A("v_rcp_f32 v26, v26")
    A("v_rcp_f32 v27, v27")
    A("v_lshlrev_b32 v30, 4, v1")
    A("s_mov_b32 exec_lo, 0")
    A("s_mov_b32 exec_hi, 0x80000000")
    A("ds_write_b128 v30, v[24:27]")
    A("s_mov_b64 exec, -1")
    A(f"s_waitcnt vmcnt({nlater})")
    for r_ in range(8):
        A(f"v_lshlrev_b32 v{32+r_}, 16, v{16+r_}")
        A(f"v_and_b32 v{40+r_}, s21, v{16+r_}")
    for j in range(4):
        A(f"v_perm_b32 v{56+j}, v{17+2*j}, v{16+2*j}, s22")
        A(f"v_perm_b32 v{8+j}, v{17+2*j}, v{16+2*j}, s23")
    A(f"s_mul_i32 s3, s12, {UX_STRIDE}")
    A("v_lshl_add_u32 v4, v0, 6, s3")
    A(f"global_store_dwordx4 v4, v[56:59], s[6:7] offset:32 {st}")
    A(f"global_store_dwordx4 v4, v[8:11], s[6:7] offset:48 {st}")
    A("v_mov_b32 v5, 0")
    A("s_waitcnt lgkmcnt(0)")
    A("s_barrier")
    for j in range(4):
        A(f"ds_read_b128 v[{16+4*j}:{19+4*j}], v5 offset:{16*j}")
    for j in range(4):
        A(f"s_waitcnt lgkmcnt({3-j})")
        cb = ((32, 48), (40, 52))
        for base, dst in cb:
            x = base + 2 * j
            A(f"v_pk_add_f32 v[{x}:{x+1}], v[{x}:{x+1}], v[{16+4*j}:{17+4*j}] neg_lo:[0,1] neg_hi:[0,1]")
        for base, dst in cb:
            x = base + 2 * j
            A(f"v_cvt_pk_bf16_f32 v{dst+j}, v{x}, v{x+1}")
        for base, dst in cb:
            x = base + 2 * j
            A(f"v_lshlrev_b32 v{x}, 16, v{dst+j}")
            A(f"v_and_b32 v{x+1}, s21, v{dst+j}")
        for base, dst in cb:
            x = base + 2 * j
            A(f"v_pk_mul_f32 v[{x}:{x+1}], v[{x}:{x+1}], v[{18+4*j}:{19+4*j}]")
        for base, dst in cb:
            x = base + 2 * j
            A(f"v_cvt_pk_bf16_f32 v{dst+j}, v{x}, v{x+1}")
    A(f"global_store_dwordx4 v4, v[48:51], s[6:7] {st}")
    A(f"global_store_dwordx4 v4, v[52:55], s[6:7] offset:16 {st}")
    if diag:
        stamp(A, diag, 2)
        A("s_waitcnt vmcnt(0)")
        stamp(A, diag, 3)
        stamp_flush(A, diag, 0, 4, 6, 60)
    A("L_k1_end:")
    A("s_endpgm")
    lines = A.finish()
    idx = [0 if c < 0 else 16 + 2 * c for c in record_index()]
    lines.append(".p2align 6")
    lines.append("L_ridx:")
    for i in range(0, len(idx), 16):
        lines.append(".short " + ", ".join(str(x) for x in idx[i:i+16]))
    return lines, kernel_desc("k1_kernel", 144, 102, 144), f"; @launch kernel=k1_kernel grid=(512,1,1) block=(256,1,1) lds={K1_LDS}"
```

```python
from asmlib import *
from layout import *
from k1 import stamp, stamp_flush, pc_addr
from k3 import Q

UZ = 48
UL = 0
UDATA = UL + UZ * 64
WL = UL + (UZ + 256 + 4) * 64
W_A4 = 3200 + 128
W_O = [0, 3328, 6656, 6656 + 2176]
W_CH = 6656 + 2 * 2176
KTL = WL + 2 * W_CH
KT_CP = 2112
K2_LDS = 98304

def gen_k2(opt):
    A = Asm()
    diag = opt.get("diag", False)
    st_h = opt.get("k2_store", "sc1")
    st_w = opt.get("k2_wstore", "sc1")
    A(kernel_header("k2_kernel"))
    A("s_cmp_ge_u32 s2, 256")
    A("s_cbranch_scc1 L_k2_end")
    stamp(A, diag, 0)
    A("s_load_dwordx2 s[4:5], s[0:1], 104")
    A("s_load_dwordx2 s[18:19], s[0:1], 48")
    A("s_load_dwordx4 s[20:23], s[0:1], 64")
    A("s_load_dwordx2 s[24:25], s[0:1], 80")
    A("v_lshrrev_b32 v1, 6, v0")
    A("s_and_b32 s27, s2, 7")
    A("v_readfirstlane_b32 s26, v1")
    A("v_and_b32 v1, 63, v0")
    A("s_lshl_b32 s27, s27, 5")
    A("s_lshr_b32 s28, s2, 3")
    A("s_add_u32 s27, s27, s28")
    A("s_mov_b32 s36, 0xffff0000")
    A("s_bfe_u32 s51, s26, 0x10001")
    A("s_and_b32 s52, s26, 1")
    A("s_cmp_ge_u32 s26, 4")
    A("s_cbranch_scc1 L_k2_uxdma")
    A(f"s_mul_i32 s28, s2, {KR_STRIDE}")
    A(f"s_mul_i32 s29, s51, {KR_CH}")
    A("s_add_u32 s28, s28, s29")
    A("s_lshl_b32 s29, s52, 11")
    A("s_add_u32 s28, s28, s29")
    A(f"s_add_u32 s28, s28, {KR_OFF + 12}")
    A("v_lshl_add_u32 v2, v1, 4, s28")
    A(f"s_mul_i32 s30, s51, {8*KT_CP}")
    A(f"s_mul_i32 s29, s52, {KT_CP}")
    A("s_add_u32 s30, s30, s29")
    A(f"s_add_u32 m0, s30, {KTL}")
    A("s_waitcnt lgkmcnt(0)")
    for s_ in range(4):
        A("global_load_lds_dwordx4 v2, s[4:5]")
        A("global_load_lds_dwordx4 v2, s[4:5] offset:1024")
        if s_ < 3:
            A(f"s_add_u32 m0, s30, {KTL + 2*(s_+1)*KT_CP}")
            A("v_add_u32 v2, -4, v2")
    A("s_lshl_b32 s28, s27, 2")
    A("s_load_dword s41, s[18:19], s28")
    A("s_branch L_k2_common")
    A("L_k2_uxdma:")
    A("v_bfe_u32 v2, v0, 2, 6")
    A("v_lshrrev_b32 v3, 4, v0")
    A("v_xor_b32 v3, v3, v0")
    A("v_and_b32 v3, 3, v3")
    A("s_lshl_b32 s29, s27, 6")
    A("v_lshl_add_u32 v3, v3, 4, s29")
    A(f"s_mov_b32 s31, {UX_STRIDE}")
    A("v_mad_u32_u24 v2, v2, s31, v3")
    A("s_lshl_b32 s30, s26, 10")
    A(f"s_add_u32 m0, s30, {UDATA - 4096}")
    A("s_waitcnt lgkmcnt(0)")
    for i in range(4):
        A("global_load_lds_dwordx4 v2, s[4:5]")
        if i < 3:
            A(f"s_add_u32 m0, s30, {UDATA + 4096*i}")
            A(f"v_add_u32 v2, {64*UX_STRIDE}, v2")
    A("L_k2_common:")
    UB = 4
    A("v_and_b32 v8, 15, v1")
    A("v_lshrrev_b32 v9, 4, v1")
    A("v_lshl_add_u32 v10, v8, 1, v9")
    for mu in range(4):
        A(f"v_add_u32 v11, {UZ - 1 - 4*mu - 32}, v10")
        A("v_bfe_u32 v12, v11, 2, 2")
        A("v_xor_b32 v12, s51, v12")
        A("v_lshlrev_b32 v11, 6, v11")
        A(f"v_lshl_add_u32 v{UB+mu}, v12, 4, v11")
    def ub(idx):
        mu = (-idx) % 4
        off = (4 * idx + 4 * mu + 32) * 64
        assert 0 <= off < 65536 and off % 1024 == 0
        return f"v{UB+mu} offset:{off}"
    A("s_cmp_ge_u32 s26, 4")
    A("s_cbranch_scc1 L_k2_aux")
    vm = Q(A, "vmcnt", 63); lg = Q(A, "lgkmcnt", 15)
    NA, FX, T4, T8 = 32, 100, 104, 128
    ACC, BR, NB = 144, 164, 10
    EU = 204
    A(f"s_mul_i32 s28, s51, {8*KT_CP}")
    A(f"s_add_u32 s28, s28, {KTL}")
    A("v_lshl_add_u32 v12, v9, 4, s28")
    A("v_and_b32 v11, 7, v8")
    A(f"v_mul_u32_u24 v11, {KT_CP}, v11")
    A("v_lshrrev_b32 v13, 3, v8")
    A("v_lshlrev_b32 v13, 4, v13")
    A("v_sub_u32 v11, v11, v13")
    A("v_add_u32 v24, v11, v12")
    A("v_and_b32 v11, 1, v8")
    A(f"v_mul_u32_u24 v11, {4*KT_CP}, v11")
    A("v_lshrrev_b32 v13, 1, v8")
    A("v_lshlrev_b32 v13, 4, v13")
    A("v_sub_u32 v11, v11, v13")
    A("v_add_u32 v25, v11, v12")
    A("v_and_b32 v11, 3, v8")
    A(f"v_mul_u32_u24 v11, {2*KT_CP}, v11")
    A("v_lshrrev_b32 v13, 2, v8")
    A("v_lshlrev_b32 v13, 4, v13")
    A("v_sub_u32 v11, v11, v13")
    A("v_add_u32 v26, v11, v12")
    A("v_bfe_u32 v11, v1, 2, 2")
    A("v_lshl_add_u32 v11, v9, 3, v11")
    A("v_bfe_u32 v12, v1, 2, 1")
    A("v_and_b32 v13, 3, v1")
    A(f"s_mul_i32 s28, s51, {W_CH}")
    A(f"s_add_u32 s28, s28, {WL + 8}")
    A("v_lshl_add_u32 v13, v13, 3, s28")
    A(f"v_mul_u32_u24 v14, {W_O[1]}, v12")
    A("v_lshl_add_u32 v14, v11, 3, v14")
    A("v_add_u32 v16, v13, v14")
    A(f"v_mul_u32_u24 v14, {W_O[3]-W_O[2]}, v12")
    A("v_lshl_add_u32 v14, v11, 4, v14")
    A(f"v_add3_u32 v17, v13, v14, 0")
    A("v_lshrrev_b32 v11, 1, v9")
    A("v_lshl_add_u32 v11, v8, 1, v11")
    A("v_bfe_u32 v12, v8, 1, 2")
    A("v_xor_b32 v12, s51, v12")
    A("v_lshlrev_b32 v11, 6, v11")
    A("v_lshl_add_u32 v11, v12, 4, v11")
    A("v_and_b32 v12, 1, v9")
    A("v_lshl_add_u32 v18, v12, 3, v11")
    A("v_xor_b32 v19, 32, v18")
    A("s_lshr_b32 s55, s27, 1")
    A("s_and_b32 s55, s55, 2")
    A("v_and_b32 v11, 1, v8")
    A("v_lshrrev_b32 v13, 1, v9")
    A("v_lshl_add_u32 v11, v11, 1, v13")
    A("v_xor_b32 v11, s55, v11")
    A("s_lshl_b32 s54, s27, 7")
    A("s_lshl_b32 s53, s51, 6")
    A("s_add_u32 s54, s54, s53")
    A(f"s_add_u32 s54, s54, {HT_OFF}")
    A("v_lshl_add_u32 v11, v11, 4, s54")
    A("v_lshrrev_b32 v13, 1, v8")
    A(f"s_mov_b32 s53, {HT_STRIDE}")
    A("v_mad_u32_u24 v20, v13, s53, v11")
    A(f"s_mov_b32 s53, {8*HT_STRIDE}")
    A("v_mad_u32_u24 v21, v12, s53, v20")
    A("s_waitcnt lgkmcnt(0)")
    A("s_lshl_b32 s42, s41, 16")
    A("s_and_b32 s43, s41, s36")
    A("s_cmp_eq_u32 s51, 0")
    A("s_cselect_b32 s42, s42, s43")
    A("s_waitcnt vmcnt(0)")
    A("s_barrier")
    stamp(A, diag, 1)
    for m in range(17):
        A(f"ds_read_b128 v[{NA+4*m}:{NA+4*m+3}], v24 offset:{16 + 1024 - 64*m}")
    A(f"ds_read_b128 v[{FX}:{FX+3}], v24 offset:{16 + 1120}")
    for dl in range(3, 9):
        A(f"ds_read_b128 v[{T4+4*(dl-3)}:{T4+4*(dl-3)+3}], v25 offset:{2*KT_CP + 1216 + 112 + 64*(8-dl)}")
    for dl in range(4, 8):
        A(f"ds_read_b128 v[{T8+4*(dl-4)}:{T8+4*(dl-4)+3}], v26 offset:{1728 + 48 + 64*(7-dl)}")
    A("s_barrier")
    stamp(A, diag, 2)
    A("s_cmp_eq_u32 s52, 1")
    A("s_cbranch_scc1 L_k2_Y")
    import copy
    def role(tiles, name):
        lq = Q(A, "lgkmcnt", 15)
        accr = {c: ACC + 4 * i for i, c in enumerate(tiles)}
        items = []
        for mu in range(8):
            js = sorted({c - (m - mu) // 8 for c in tiles for m in (mu, mu + 8, mu + 16) if m <= 16})
            for j in js:
                idx = 8 * j - mu
                if idx < -8: continue
                uses = [(c, m) for c in tiles for m in (mu, mu + 8, mu + 16) if m <= 16 and 8 * c - m == idx]
                if mu == 0: uses += [(c, 32) for c in tiles if c >= 4 and 8 * c - 32 == idx]
                items.append((("B", idx), uses))
        have = {it[0][1] for it in items}
        for c in tiles:
            if c >= 4 and (8 * c - 32) not in have: items.append((("B", 8 * c - 32), [(c, 32)]))
        nnear = len(items)
        for blk in range(12):
            uses = [(c, 2 * c - blk) for c in tiles if 3 <= 2 * c - blk <= 8]
            if uses: items.append((("V4", blk), uses))
        for blk in range(4):
            uses = [(c, c - blk) for c in tiles if 4 <= c - blk <= 7]
            if uses: items.append((("V8", blk), uses))
        def load(i):
            kind, x = items[i][0]; rg = BR + 4 * (i % NB)
            if kind == "B":
                A(f"ds_read_b128 v[{rg}:{rg+3}], {ub(x)}"); lq.issue(i)
            else:
                sg = 4 if kind == "V4" else 8
                for rho in range(2):
                    off = (0 if sg == 4 else W_O[2]) + 2 * sg * (32 * x + 4 * rho)
                    A(f"ds_read_b64_tr_b16 v[{rg+2*rho}:{rg+2*rho+1}], v{16 if sg == 4 else 17} offset:{off}"); lq.issue(i)
        D = opt.get("k2_D", 6)
        started = set(); nmf = 0; bar_at = opt.get("k2_bar", 40); barred = False
        nl = 0
        def pumpto(n):
            nonlocal nl, barred
            while nl < min(n, len(items)):
                if nl >= nnear and not barred:
                    A("s_barrier"); barred = True
                load(nl); nl += 1
        pumpto(D)
        for c in tiles:
            e = EU + 4 * tiles.index(c)
            A(f"ds_read_b64 v[{e}:{e+1}], v18 offset:{UDATA + 2048*c}"); lq.issue()
            A(f"ds_read_b64 v[{e+2}:{e+3}], v19 offset:{UDATA + 2048*c}"); lq.issue()
        for i, ((kind, x), uses) in enumerate(items):
            rg = BR + 4 * (i % NB)
            lq.wait(i)
            for k, (c, p) in enumerate(uses):
                d = accr[c]
                cc = f"v[{d}:{d+3}]" if c in started else "0"
                started.add(c)
                if kind == "B":
                    ar = FX if p == 32 else NA + 4 * p
                    A(f"v_mfma_f32_16x16x32_bf16 v[{d}:{d+3}], v[{ar}:{ar+3}], v[{rg}:{rg+3}], {cc}")
                else:
                    br = T4 + 4 * (p - 3) if kind == "V4" else T8 + 4 * (p - 4)
                    A(f"v_mfma_f32_16x16x32_bf16 v[{d}:{d+3}], v[{rg}:{rg+3}], v[{br}:{br+3}], {cc}")
                nmf += 1
                if k == 0: pumpto(i + 1 + D)
                if nmf >= bar_at and not barred:
                    A("s_barrier"); barred = True
        print(name, "mfmas", nmf, "loads", len(items))
        stamp(A, diag, 3)
        T = 24
        for c in tiles:
            e = EU + 4 * tiles.index(c); d = accr[c]
            for h_ in range(2):
                A(f"v_lshlrev_b32 v{T+2*h_}, 16, v{e+h_}")
                A(f"v_and_b32 v{T+2*h_+1}, s36, v{e+h_}")
            for j in range(4): A(f"v_mul_f32 v{T+j}, s42, v{T+j}")
            for h_ in range(2):
                A(f"v_cvt_pk_bf16_f32 v{e+h_}, v{T+2*h_}, v{T+2*h_+1}")
                A(f"v_cvt_pk_bf16_f32 v{d+2*h_+1}, v{d+2*h_}, v{d+2*h_+1}")
            for h_ in range(2):
                A(f"v_lshlrev_b32 v{T+2*h_}, 16, v{e+h_}")
                A(f"v_and_b32 v{T+2*h_+1}, s36, v{e+h_}")
                A(f"v_lshlrev_b32 v{d+2*h_}, 16, v{d+2*h_+1}")
                A(f"v_and_b32 v{d+2*h_+1}, s36, v{d+2*h_+1}")
            for h_ in range(2):
                A(f"v_pk_add_f32 v[{d+2*h_}:{d+2*h_+1}], v[{d+2*h_}:{d+2*h_+1}], v[{T+2*h_}:{T+2*h_+1}]")
            for h_ in range(2):
                A(f"v_cvt_pk_bf16_f32 v{d+2*h_+1}, v{d+2*h_}, v{d+2*h_+1}")
                A(f"v_lshlrev_b32 v{T+2*h_}, 16, v{e+2+h_}")
                A(f"v_and_b32 v{T+2*h_+1}, s36, v{e+2+h_}")
            for h_ in range(2):
                A(f"v_lshlrev_b32 v{d+2*h_}, 16, v{d+2*h_+1}")
                A(f"v_and_b32 v{d+2*h_+1}, s36, v{d+2*h_+1}")
            for h_ in range(2):
                A(f"v_pk_add_f32 v[{d+2*h_}:{d+2*h_+1}], v[{d+2*h_}:{d+2*h_+1}], v[{T+2*h_}:{T+2*h_+1}]")
            k = tiles.index(c)
            o = BR + 4 * (k // 2)
            for h_ in range(2):
                A(f"v_cvt_pk_bf16_f32 v{o+2*(k%2)+h_}, v{d+2*h_}, v{d+2*h_+1}")
            last = k == len(tiles) - 1
            if k % 2 == 0 and last:
                A(f"v_mov_b32 v{o+2}, v{o}"); A(f"v_mov_b32 v{o+3}, v{o+1}")
            if k % 2 == 1 or last:
                c0 = tiles[k - k % 2]
                A(f"v_add_u32 v22, {8*c0*HT_STRIDE}, v{21 if k % 2 == 1 else 20}")
                A(f"v_permlane16_swap_b32 v{o}, v{o+2}")
                A(f"v_permlane16_swap_b32 v{o+1}, v{o+3}")
                A(f"global_store_dwordx4 v22, v[{o}:{o+3}], s[4:5] {st_h}")
        A("s_branch L_k2_fin")
    role([0, 1, 2, 3, 4], "X")
    A("L_k2_Y:")
    role([5, 6, 7], "Y")
    A("L_k2_aux:")
    A("s_setprio 2")
    A("s_sub_u32 s45, s26, 4")
    A("s_mov_b32 s37, 0x05040100")
    A("s_mov_b32 s38, 0x07060302")
    A("v_lshlrev_b32 v11, 4, v1")
    pc_addr(A, "L_band", "L_k2_pc", 12, 11, s0=46)
    for w in range(4):
        A(f"global_load_dwordx4 v[{32+4*w}:{35+4*w}], v[12:13], off offset:{1024*w}")
    A("s_mov_b32 s35, 0x20000")
    A("s_cmp_ge_u32 s2, 112")
    A("s_cbranch_scc1 L_k2_w2ld")
    A("s_mov_b32 s44, 1")
    A("s_and_b32 s46, s45, 1")
    A("s_cmp_eq_u32 s46, 0")
    A("s_cselect_b32 s32, s20, s22")
    A("s_cselect_b32 s33, s21, s23")
    A(f"s_mov_b32 s34, {512*3584}")
    A("s_lshr_b32 s47, s2, 3")
    A("s_and_b32 s48, s2, 7")
    A("s_lshr_b32 s49, s45, 1")
    A("s_lshl_b32 s48, s48, 1")
    A("s_add_u32 s48, s48, s49")
    A(f"s_mul_i32 s49, s48, {32*3584}")
    A("s_lshl_b32 s50, s47, 8")
    A("s_add_u32 s49, s49, s50")
    A(f"v_mul_u32_u24 v2, {8*3584}, v9")
    A("v_lshl_add_u32 v2, v8, 4, v2")
    for e in range(8):
        if e and e % 2 == 0: A("s_add_u32 s49, s49, 7168")
        A(f"buffer_load_dwordx4 v[{128+4*e}:{131+4*e}], v2, s[32:35], s49 offen offset:{3584*(e%2)}")
    A("s_branch L_k2_aux2")
    A("L_k2_w2ld:")
    A("s_mov_b32 s44, 2")
    A("s_sub_u32 s46, s2, 112")
    A("s_cmp_ge_u32 s46, 112")
    A("s_cselect_b32 s44, 3, s44")
    A("s_min_u32 s46, s46, 111")
    A("s_mov_b32 s32, s24")
    A("s_mov_b32 s33, s25")
    A(f"s_mov_b32 s34, {1792*1024}")
    A("s_and_b32 s48, s46, 1")
    A("s_lshl_b32 s48, s48, 2")
    A("s_add_u32 s48, s48, s45")
    A("s_lshr_b32 s46, s46, 1")
    A("s_lshr_b32 s47, s46, 2")
    A("s_lshl_b32 s47, s47, 7")
    A("s_and_b32 s49, s46, 3")
    A("s_lshl_b32 s49, s49, 1")
    A("s_add_u32 s47, s47, s49")
    A("s_lshl_b32 s47, s47, 10")
    A("s_lshl_b32 s49, s48, 7")
    A("s_add_u32 s47, s47, s49")
    A("v_lshrrev_b32 v2, 5, v1")
    A("v_lshlrev_b32 v2, 10, v2")
    A("v_bfe_u32 v3, v1, 4, 1")
    A("v_lshl_add_u32 v2, v3, 16, v2")
    A("v_lshl_add_u32 v2, v8, 3, v2")
    for e in range(8):
        if e: A("s_add_u32 s47, s47, 8192")
        A(f"buffer_load_dwordx2 v[{128+2*e}:{129+2*e}], v2, s[32:35], s47 offen")
    A("L_k2_aux2:")
    A("v_mov_b32 v12, 0\nv_mov_b32 v13, 0\nv_mov_b32 v14, 0\nv_mov_b32 v15, 0")
    A("v_and_b32 v2, 255, v0")
    A("v_min_u32 v3, 207, v2")
    A("v_cmp_lt_u32 vcc, 191, v3")
    A("v_lshlrev_b32 v3, 4, v3")
    A("v_add_u32 v11, 16384, v3")
    A("v_cndmask_b32 v3, v3, v11, vcc")
    A("ds_write_b128 v3, v[12:15]")
    A("v_and_b32 v3, 1, v0")
    A("v_bfe_u32 v11, v0, 1, 1")
    A(f"v_mul_u32_u24 v11, {W_CH}, v11")
    A("v_lshl_add_u32 v3, v3, 4, v11")
    for w in range(4): A(f"ds_write_b128 v3, v[12:15] offset:{WL + W_O[w]}")
    A(f"s_mul_i32 s28, s51, {W_CH}")
    A(f"s_add_u32 s28, s28, {WL + 32}")
    A("v_lshlrev_b32 v16, 5, v8")
    A("v_lshl_add_u32 v16, v9, 3, v16")
    A("v_add_u32 v16, s28, v16")
    stamp(A, diag, 1)
    A("s_barrier")
    A("s_waitcnt vmcnt(8) lgkmcnt(0)")
    A("s_barrier")
    stamp(A, diag, 2)
    A("s_cmp_eq_u32 s52, 1")
    A("s_cbranch_scc1 L_k2_winY")
    def windows(tiles, nw):
        for i, c in enumerate(tiles):
            A(f"ds_read_b128 v[{48+4*i}:{51+4*i}], {ub(8*c)}")
        jobs = [(i, c, w) for i, c in enumerate(tiles) for w in range(nw)]
        def fin(k):
            i, c, w = jobs[k]; d = 64 + 4 * k
            A(f"v_cvt_pk_bf16_f32 v{d}, v{d}, v{d+1}")
            A(f"v_cvt_pk_bf16_f32 v{d+1}, v{d+2}, v{d+3}")
            A(f"ds_write_b64 v16, v[{d}:{d+1}] offset:{W_O[w] + 512*c}")
        A("s_waitcnt lgkmcnt(0)")
        for k, (i, c, w) in enumerate(jobs):
            d = 64 + 4 * k
            A(f"v_mfma_f32_16x16x32_bf16 v[{d}:{d+3}], v[{32+4*w}:{35+4*w}], v[{48+4*i}:{51+4*i}], 0")
            if k >= 3: fin(k - 3)
        for k in range(max(0, len(jobs) - 3), len(jobs)): fin(k)
    windows([4, 5], 2)
    A("s_branch L_k2_wind")
    A("L_k2_winY:")
    windows([0, 1, 2, 3], 4)
    A("L_k2_wind:")
    A("s_waitcnt lgkmcnt(0)")
    A("s_setprio 0")
    A("s_barrier")
    stamp(A, diag, 3)
    A("s_cmp_eq_u32 s44, 2")
    A("s_cbranch_scc1 L_k2_w2work")
    A("s_cmp_eq_u32 s44, 3")
    A("s_cbranch_scc1 L_k2_fin")
    A("s_lshr_b32 s49, s48, 1")
    A("s_mul_i32 s49, s49, 28672")
    A("s_and_b32 s50, s48, 1")
    A("s_lshl_b32 s50, s50, 11")
    A("s_add_u32 s49, s49, s50")
    A("s_lshl_b32 s50, s46, 10")
    A("s_add_u32 s49, s49, s50")
    A(f"s_add_u32 s49, s49, {W13_OFF}")
    A("v_lshl_add_u32 v2, v1, 4, s49")
    for j in range(4): A(f"v_mov_b32 v{4+j}, 0x3f803f80")
    A("s_lshl_b32 s51, s47, 3")
    A("s_waitcnt vmcnt(0)")
    for c in range(8):
        o = 16 + 4 * c
        A("s_mul_i32 s52, s51, 9363")
        A("s_lshr_b32 s52, s52, 16")
        A(f"s_mul_i32 s53, s52, {229376 - 7*4096}")
        A("s_lshl_b32 s54, s51, 12")
        A("s_add_u32 s53, s53, s54")
        A("v_add_u32 v3, s53, v2")
        for j in range(4):
            A(f"v_perm_b32 v{o+j}, v{128+4*(2*j+1)+(c>>1)}, v{128+4*(2*j)+(c>>1)}, s{38 if c & 1 else 37}")
        A(f"global_store_dwordx4 v3, v[{o}:{o+3}], s[4:5] {st_w}")
        A(f"v_mfma_f32_16x16x32_bf16 v[{64+4*c}:{67+4*c}], v[4:7], v[{o}:{o+3}], 0")
        A("s_add_u32 s51, s51, 1")
    A("s_lshl_b32 s49, s47, 14")
    A("s_lshl_b32 s50, s46, 10")
    A("s_add_u32 s49, s49, s50")
    A("s_lshr_b32 s50, s48, 2")
    A("s_lshl_b32 s50, s50, 8")
    A("s_add_u32 s49, s49, s50")
    A("s_and_b32 s50, s48, 3")
    A("s_lshl_b32 s50, s50, 2")
    A("s_add_u32 s49, s49, s50")
    A(f"s_add_u32 s49, s49, {CS_OFF}")
    A("v_lshlrev_b32 v3, 4, v8")
    A("v_lshl_add_u32 v3, v9, 12, v3")
    A("v_add_u32 v3, s49, v3")
    for q in range(1, 4):
        A(f"v_cmp_eq_u32 vcc, {q}, v9")
        A(f"v_cndmask_b32 v64, v64, v{64+8*q}, vcc")
        A(f"v_cndmask_b32 v68, v68, v{68+8*q}, vcc")
    for k_, rg in enumerate((64, 68)):
        A(f"v_cvt_pk_bf16_f32 v10, v{rg}, v{rg}")
        A("v_lshlrev_b32 v10, 16, v10")
        A(f"v_sub_f32 v10, v{rg}, v10")
        A(f"v_cvt_pk_bf16_f32 v{11+k_}, v{rg}, v10")
        A(f"global_store_dword v3, v{11+k_}, s[4:5] offset:{2048*k_} {st_w}")
    A("s_branch L_k2_fin")
    A("L_k2_w2work:")
    A(f"s_mul_i32 s49, s48, {56*4096}")
    A("s_lshl_b32 s50, s46, 12")
    A("s_add_u32 s49, s49, s50")
    A(f"s_add_u32 s49, s49, {W2_OFF}")
    A("v_lshl_add_u32 v2, v1, 4, s49")
    A("s_waitcnt vmcnt(0)")
    for dt in range(4):
        o = 16 + 4 * dt
        for j in range(4):
            A(f"v_perm_b32 v{o+j}, v{128+2*(2*j+1)+(dt>>1)}, v{128+2*(2*j)+(dt>>1)}, s{38 if dt & 1 else 37}")
        A(f"global_store_dwordx4 v2, v[{o}:{o+3}], s[4:5] offset:{1024*dt} {st_w}")
    A("L_k2_fin:")
    if diag:
        A("s_and_b32 s68, s26, 3")
        A(f"s_cmp_lg_u32 s68, {opt.get('k2_stampwave', 0)}")
        A("s_cbranch_scc1 L_k2_end")
        stamp(A, diag, 4)
        A("s_waitcnt vmcnt(0)")
        stamp(A, diag, 5)
        stamp_flush(A, diag, 2, 6, 4, 60, wave_sreg=26)
    A("L_k2_end:")
    A("s_endpgm")
    lines = A.finish()
    lines.append(".p2align 6")
    lines.append("L_band:")
    for h in (2, 1, 4, 3):
        for l in range(64):
            b, kq = l & 15, l >> 4
            lines.append(".short " + ", ".join("0x3f80" if abs(8 * kq + e - b - 4) <= h else "0" for e in range(8)))
    return lines, kernel_desc("k2_kernel", 232, 102, 232), f"; @launch kernel=k2_kernel grid=(256,1,1) block=(512,1,1) lds={K2_LDS}"
```

```python
from asmlib import *
from layout import *
from k1 import stamp, stamp_flush

SLOT = 45056
CSL3 = 3 * SLOT
HTL  = CSL3 + 14336
K3_LDS = HTL + 8192
LOG2E = 0x3fb8aa3b

class Q:
    def __init__(self, A, name, mx):
        self.A, self.name, self.mx = A, name, mx
        self.n = 0; self.done = 0; self.tag = {}
    def issue(self, tag=None):
        self.n += 1
        if tag is not None: self.tag[tag] = self.n
    def wait(self, tag):
        k = self.tag[tag]
        if k <= self.done: return
        c = min(self.n - k, self.mx)
        self.A(f"s_waitcnt {self.name}({c})")
        self.done = self.n - c
    def wait_all(self):
        if self.done < self.n: self.A(f"s_waitcnt {self.name}(0)")
        self.done = self.n

def gen_k3(opt):
    A = Asm()
    diag = opt.get("diag", False)
    X, G = opt.get("k3_X", 6), opt.get("k3_G", 4)
    RA = 14
    ACC = 0 + 16
    AR  = 128
    BR  = 184
    GS  = 200
    ONES = 216
    VA  = 220
    VB  = 223
    VL  = 229
    TMP = 230
    def acc(T, mat, n): return ACC + 16 * T + 8 * mat + 4 * n
    vm = Q(A, "vmcnt", 63); lg = Q(A, "lgkmcnt", 15)
    A(kernel_header("k3_kernel"))
    A("s_cmp_ge_u32 s2, 256")
    A("s_cbranch_scc1 L_k3_end")
    stamp(A, diag, 0)
    A("s_load_dwordx2 s[4:5], s[0:1], 104")
    A("s_load_dwordx2 s[6:7], s[0:1], 88")
    A("v_lshrrev_b32 v1, 6, v0")
    A("s_and_b32 s20, s2, 7")
    A("v_readfirstlane_b32 s12, v1")
    A("v_and_b32 v1, 63, v0")
    A("s_lshr_b32 s21, s2, 3")
    A("s_lshr_b32 s13, s20, 2")
    A("s_lshl_b32 s13, s13, 3")
    A("s_and_b32 s22, s21, 7")
    A("s_add_u32 s13, s13, s22")
    A("s_and_b32 s14, s20, 3")
    A("s_lshl_b32 s14, s14, 2")
    A("s_lshr_b32 s22, s21, 3")
    A("s_add_u32 s14, s14, s22")
    A("s_lshl_b32 s15, s20, 2")
    A("s_and_b32 s22, s21, 3")
    A("s_add_u32 s15, s15, s22")
    A("s_lshr_b32 s16, s21, 2")
    A(f"v_lshlrev_b32 v{VL}, 4, v1")
    A("s_mul_i32 s17, s14, 229376")
    A("s_mul_i32 s19, s12, 7168")
    A("s_add_u32 s17, s17, s19")
    A(f"s_add_u32 s17, s17, {W13_OFF}")
    A("s_lshl_b32 s18, s13, 2")
    A("s_add_u32 s18, s18, s12")
    A(f"s_mul_i32 s18, s18, {HT_STRIDE}")
    A(f"s_add_u32 s18, s18, {HT_OFF}")
    A("s_lshl_b32 s23, s12, 12")
    A("s_add_u32 s23, s23, 28672")
    rot = opt.get("k3_rot", False)
    A("s_and_b32 s44, s21, 7")
    A("s_lshr_b32 s22, s21, 3")
    A("s_lshl_b32 s22, s22, 1")
    A("s_add_u32 s44, s44, s22")
    A("s_and_b32 s44, s44, 7" if rot else "s_mov_b32 s44, 0")
    A("s_mov_b32 s45, s17")
    A("s_mov_b32 s46, s18")
    A(f"s_mov_b32 s10, {WS_USED}")
    A("s_mov_b32 s11, 0x20000")
    A("s_waitcnt lgkmcnt(0)")
    A("s_mov_b32 s8, s4")
    A("s_mov_b32 s9, s5")
    def dma_ops(st):
        sl = (st % 3) * SLOT
        o = []
        o.append(("s_lshl_b32 s18, s44, 12", False))
        o.append((f"s_add_u32 m0, s23, {sl}", False))
        o.append(("s_add_u32 s18, s18, s46", False))
        for k in range(4): o.append((f"buffer_load_dwordx4 v{VL}, s[8:11], s18 offen offset:{1024*k} lds", True))
        o.append(("s_mul_i32 s17, s44, 28672", False))
        o.append((f"s_add_u32 m0, s19, {sl}", False))
        o.append(("s_add_u32 s17, s17, s45", False))
        for k in range(4): o.append((f"buffer_load_dwordx4 v{VL}, s[8:11], s17 offen offset:{1024*k} lds", True))
        o.append((f"s_add_u32 m0, s19, {sl + 4096}", False))
        o.append(("s_add_u32 s17, s17, 4096", False))
        for k in range(3): o.append((f"buffer_load_dwordx4 v{VL}, s[8:11], s17 offen offset:{1024*k} lds", True))
        o.append(("s_add_u32 s44, s44, 1", False))
        o.append(("s_and_b32 s44, s44, 7", False))
        return o
    def emit(op, tag=None):
        A(op[0])
        if op[1]: vm.issue(tag)
    side = []
    side2 = []
    for op in dma_ops(0): emit(op, ("st", 0))
    side.extend((op, ("st", 1)) for op in dma_ops(1))
    side.extend((op, ("st", 2)) for op in dma_ops(2))
    def pop_vm(lst):
        while lst:
            op, tag = lst.pop(0); emit(op, tag)
            if op[1]: break
        while lst and not lst[0][0][1] and "m0" not in lst[0][0][0] and not any(x[0][1] for x in lst):
            op, tag = lst.pop(0); emit(op, tag)
    for _ in range(opt.get("k3_npre", 4)): pop_vm(side)
    A("s_min_u32 s24, s12, 2")
    A("s_lshl_b32 s24, s24, 12")
    A("s_cmp_eq_u32 s12, 3")
    A("s_cselect_b32 s24, 10240, s24")
    A(f"s_add_u32 s49, s24, {CSL3}")
    A("s_mul_i32 s48, s14, 14336")
    A("s_add_u32 s48, s48, s24")
    A(f"s_add_u32 s48, s48, {CS_OFF}")
    auxops = [("s_mov_b32 m0, s49", False)]
    for k in range(4): auxops.append((f"buffer_load_dwordx4 v{VL}, s[8:11], s48 offen offset:{1024*k} lds", True))
    A("s_lshl_b32 s24, s12, 11")
    A(f"s_add_u32 s51, s24, {HTL}")
    A("s_lshl_b32 s25, s15, 1")
    A("s_lshr_b32 s26, s12, 1")
    A("s_add_u32 s25, s25, s26")
    A(f"s_mul_i32 s25, s25, {HT_STRIDE}")
    A("s_lshl_b32 s26, s16, 12")
    A("s_add_u32 s25, s25, s26")
    A("s_and_b32 s26, s12, 1")
    A("s_lshl_b32 s26, s26, 11")
    A("s_add_u32 s25, s25, s26")
    A(f"s_add_u32 s50, s25, {HT_OFF}")
    auxops.append(("s_mov_b32 m0, s51", False))
    for k in range(2): auxops.append((f"buffer_load_dwordx4 v{VL}, s[8:11], s50 offen offset:{1024*k} lds", True))
    for sl in range(3): A(f"v_add_u32 v{VA+sl}, {sl*SLOT}, v{VL}")
    A("v_lshrrev_b32 v2, 4, v1")
    A("v_bfe_u32 v3, v1, 2, 2")
    A("v_lshl_add_u32 v3, v2, 3, v3")
    A("v_lshlrev_b32 v3, 6, v3")
    A("v_and_b32 v4, 3, v1")
    A("v_lshl_add_u32 v3, v4, 3, v3")
    A("v_and_b32 v4, 1, v2")
    A("v_lshl_add_u32 v3, v4, 5, v3")
    A("v_add_u32 v3, s23, v3")
    A("v_xor_b32 v4, 32, v3")
    for sl in range(3):
        A(f"v_add_u32 v{VB+2*sl}, {sl*SLOT}, v3")
        A(f"v_add_u32 v{VB+2*sl+1}, {sl*SLOT}, v4")
    for j in range(4): A(f"v_mov_b32 v{ONES+j}, 0x3f803f80")
    A("v_and_b32 v4, 3, v1")
    A("v_cmp_eq_u32 s[30:31], 1, v4")
    A("v_cmp_eq_u32 s[32:33], 2, v4")
    A("v_cmp_eq_u32 s[34:35], 3, v4")
    A("v_bfe_u32 v4, v1, 2, 2")
    A("v_cmp_eq_u32 s[36:37], v2, v4")
    A("s_mov_b32 s38, 0xffff0000")
    A("s_mul_i32 s47, s16, 7")
    A("s_and_b32 s22, s21, 3")
    A("s_mul_i32 s22, s22, 14")
    A("s_add_u32 s47, s47, s22")
    A("s_lshr_b32 s47, s47, 2")
    if not rot: A("s_mov_b32 s47, 0")
    A("s_mul_i32 s22, s12, 14")
    A("s_add_u32 s47, s47, s22")
    A("s_cmp_ge_u32 s47, 56")
    A("s_cselect_b32 s22, 56, 0")
    A("s_sub_u32 s47, s47, s22")
    A(f"s_mul_i32 s28, s16, {56*4096}")
    A(f"s_add_u32 s28, s28, {W2_OFF}")
    A(f"s_add_u32 s29, s28, {56*4096}")
    A("s_lshl_b32 s27, s47, 12")
    A("s_add_u32 s27, s27, s28")
    w2ops = []
    for f in range(56):
        w2ops.append((f"buffer_load_dwordx4 a[{4*f}:{4*f+3}], v{VL}, s[8:11], s27 offen offset:{1024*(f%4)}", True))
        if f % 4 == 3:
            w2ops.append(("s_add_u32 s27, s27, 4096", False))
            w2ops.append(("s_cmp_ge_u32 s27, s29", False))
            w2ops.append(("s_cselect_b32 s27, s28, s27", False))
    NF = 16 * 14
    def rdA(f):
        sg, r_ = divmod(f, 14); st = sg >> 1
        reg = AR + 4 * (f % RA)
        A(f"ds_read_b128 v[{reg}:{reg+3}], v{VA + st % 3} offset:{(r_>>1)*4096 + (sg&1)*2048 + (r_&1)*1024}")
        lg.issue(("A", f))
    def rdB(sg, n, rho):
        st = sg >> 1
        reg = BR + 8 * (sg & 1) + 4 * n + 2 * rho
        A(f"ds_read_b64_tr_b16 v[{reg}:{reg+1}], v{VB + 2*(st % 3) + n} offset:{(sg&1)*2048 + rho*256}")
        lg.issue(("B", sg, n))
    def rdC(f):
        reg = AR + 4 * ((NF + f) % RA)
        A(f"ds_read_b128 v[{reg}:{reg+3}], v{TMP} offset:{1024*f}")
        lg.issue(("A", NF + f))
    A(f"v_add_u32 v{TMP}, {CSL3}, v{VL}")
    if not opt.get("k3_now2"): side2.extend((op, "w2") for op in w2ops)
    pend = []
    def stage_open(st):
        lg.wait_all()
        while any(x[1] == ("st", st) for x in side): pop_vm(side)
        vm.wait(("st", st))
        if st == 7: vm.wait("aux")
        A("s_barrier")
        if opt.get("k3_ststamp") and st >= 1: stamp(A, diag, 8 + st)
        if st >= 1 and st + 2 < 8:
            if opt.get("k3_nodma"): vm.tag[("st", st + 2)] = 0
            else: side.extend((op, ("st", st + 2)) for op in dma_ops(st + 2))
        if st == 5: side.extend((op, "aux") for op in auxops)
        for n in range(2):
            for rho in range(2): pend.append((14 * (2 * st - 1), lambda n=n, rho=rho: rdB(2 * st, n, rho)))
        for k in range(28):
            pend.append((0, lambda k=k: rdA(28 * st + k)))
            if k == 8:
                for n in range(2):
                    for rho in range(2): pend.append((14 * (2 * st), lambda n=n, rho=rho: rdB(2 * st + 1, n, rho)))
        if st == 7:
            for k in range(14): pend.append((0, lambda k=k: rdC(k)))
    issuedA = [0]
    def pump(f_cur, maxn):
        k = 0
        while pend and k < maxn:
            nA = sum(1 for t in lg.tag if t[0] == "A")
            if nA - f_cur >= X + G + 1: break
            if pend[0][0] > f_cur: break
            pend.pop(0)[1](); k += 1
    credit = [0.0]
    rates = opt.get("k3_rates", [22, 15, 15, 15, 15, 15, 15, 15])
    def pace(f):
        credit[0] += rates[min(f // 28, 7)] / 56.0
        if credit[0] >= 1.0:
            if side: pop_vm(side); credit[0] -= 1.0
            elif side2 and f >= 28: pop_vm(side2); credit[0] -= 1.0
            else: credit[0] = 1.0
    stage_open(0)
    if diag: stamp(A, diag, 1)
    pump(0, 4 + X)
    fin = []
    for f in range(NF):
        sg, r_ = divmod(f, 14); T, mat = divmod(r_, 2)
        if (f + X) % 28 == 0 and f + X < NF:
            assert not pend, (f, len(pend))
            stage_open((f + X) // 28)
        b0 = BR + 8 * (sg & 1)
        if r_ == 0:
            lg.wait(("B", sg, 1))
            for n in range(2):
                c = "0" if sg == 0 else f"v[{GS+4*n}:{GS+4*n+3}]"
                A(f"v_mfma_f32_16x16x32_bf16 v[{GS+4*n}:{GS+4*n+3}], v[{b0+4*n}:{b0+4*n+3}], v[{b0+4*n}:{b0+4*n+3}], {c}")
                c = "0" if sg == 0 else f"v[{GS+8+4*n}:{GS+8+4*n+3}]"
                A(f"v_mfma_f32_16x16x32_bf16 v[{GS+8+4*n}:{GS+8+4*n+3}], v[{ONES}:{ONES+3}], v[{b0+4*n}:{b0+4*n+3}], {c}")
            if sg == 15:
                t = TMP + 2
                for n in range(2):
                    g_ = GS + 4 * n
                    fin += [f"v_cndmask_b32 v{g_}, v{g_}, v{g_+1}, s[30:31]", f"v_cndmask_b32 v{g_}, v{g_}, v{g_+2}, s[32:33]",
                            f"v_cndmask_b32 v{g_}, v{g_}, v{g_+3}, s[34:35]", f"v_cndmask_b32 v{g_}, 0, v{g_}, s[36:37]",
                            f"v_mov_b32 v{g_+1}, v{g_}"]
                fin += [f"v_permlane16_swap_b32 v{GS}, v{GS+1}", f"v_permlane16_swap_b32 v{GS+4}, v{GS+5}",
                        f"v_add_f32 v{GS}, v{GS}, v{GS+1}", f"v_add_f32 v{GS+4}, v{GS+4}, v{GS+5}",
                        f"v_mov_b32 v{GS+1}, v{GS}", f"v_mov_b32 v{GS+5}, v{GS+4}",
                        f"v_mul_f32 v{GS+8}, 0x3b000000, v{GS+8}", f"v_mul_f32 v{GS+12}, 0x3b000000, v{GS+12}",
                        f"v_permlane32_swap_b32 v{GS}, v{GS+1}", f"v_permlane32_swap_b32 v{GS+4}, v{GS+5}",
                        f"v_add_f32 v{GS}, v{GS}, v{GS+1}", f"v_add_f32 v{GS+4}, v{GS+4}, v{GS+5}",
                        f"v_cvt_pk_bf16_f32 v{t}, -v{GS+8}, -v{GS+8}", f"v_cvt_pk_bf16_f32 v{t+4}, -v{GS+12}, -v{GS+12}",
                        f"v_mul_f32 v{GS}, 0x3b000000, v{GS}", f"v_mul_f32 v{GS+4}, 0x3b000000, v{GS+4}"]
                fin += [f"v_mov_b32 v{t+j}, v{t}" for j in (1, 2, 3)] + [f"v_mov_b32 v{t+4+j}, v{t+4}" for j in (1, 2, 3)]
                fin += [f"v_fma_f32 v{GS}, -v{GS+8}, v{GS+8}, v{GS}", f"v_fma_f32 v{GS+4}, -v{GS+12}, v{GS+12}, v{GS+4}",
                        f"v_max_f32 v{GS}, 0, v{GS}", f"v_max_f32 v{GS+4}, 0, v{GS+4}",
                        f"v_cvt_pk_bf16_f32 v{GS+1}, v{GS}, v{GS+4}",
                        f"v_lshlrev_b32 v{GS}, 16, v{GS+1}", f"v_and_b32 v{GS+4}, s38, v{GS+1}",
                        f"v_add_f32 v{GS}, 0x3727c5ac, v{GS}", f"v_add_f32 v{GS+4}, 0x3727c5ac, v{GS+4}",
                        f"v_cvt_pk_bf16_f32 v{GS+1}, v{GS}, v{GS+4}",
                        f"v_lshlrev_b32 v{GS}, 16, v{GS+1}", f"v_and_b32 v{GS+4}, s38, v{GS+1}",
                        f"v_sqrt_f32 v{GS}, v{GS}", f"v_sqrt_f32 v{GS+4}, v{GS+4}",
                        f"v_cvt_pk_bf16_f32 v{GS+1}, v{GS}, v{GS+4}",
                        f"v_lshlrev_b32 v{GS}, 16, v{GS+1}", f"v_and_b32 v{GS+4}, s38, v{GS+1}",
                        f"v_rcp_f32 v{GS+2}, v{GS}", f"v_rcp_f32 v{GS+6}, v{GS+4}",
                        f"v_mul_f32 v{GS}, v{GS}, v{GS}", f"v_mul_f32 v{GS+4}, v{GS+4}, v{GS+4}",
                        f"v_mul_f32 v{GS+2}, {0x80000000 | LOG2E:#x}, v{GS+2}", f"v_mul_f32 v{GS+6}, {0x80000000 | LOG2E:#x}, v{GS+6}"]
        lg.wait(("A", f))
        ar = AR + 4 * (f % RA)
        for n in range(2):
            d = acc(T, mat, n)
            c = "0" if sg == 0 else f"v[{d}:{d+3}]"
            A(f"v_mfma_f32_16x16x32_bf16 v[{d}:{d+3}], v[{ar}:{ar+3}], v[{b0+4*n}:{b0+4*n+3}], {c}")
            pump(f, 1)
            pace(f)
            if fin and r_ >= 2:
                for _ in range(2):
                    if fin: A(fin.pop(0))
    assert not side, len(side)
    BX = TMP + 2
    nb = sum(1 for x in fin if f"v{BX}" in x or f"v{BX+4}" in x)
    while any((f"v_mov_b32 v{BX+j}," in x) for x in fin for j in range(8)): A(fin.pop(0))
    for f in range(14):
        T, mat = divmod(f, 2)
        pump(NF + f, 2)
        lg.wait(("A", NF + f))
        ar = AR + 4 * ((NF + f) % RA)
        for n in range(2):
            d = acc(T, mat, n)
            A(f"v_mfma_f32_16x16x32_bf16 v[{d}:{d+3}], v[{ar}:{ar+3}], v[{BX+4*n}:{BX+4*n+3}], v[{d}:{d+3}]")
            if fin: A(fin.pop(0))
            pace(NF - 1)
    while fin: A(fin.pop(0))
    if diag: stamp(A, diag, 2)
    A("s_lshl_b32 s24, s13, 3")
    A("s_lshl_b32 s25, s12, 1")
    A("s_add_u32 s24, s24, s25")
    A(f"s_mul_i32 s24, s24, {HID_STRIDE}")
    A(f"s_mul_i32 s25, s14, {7*512}")
    A("s_add_u32 s24, s24, s25")
    A(f"s_add_u32 s24, s24, {HID_OFF}")
    A("v_bfe_u32 v2, v1, 4, 1")
    A(f"v_mul_u32_u24 v2, {HID_STRIDE}, v2")
    A("v_lshrrev_b32 v3, 5, v1")
    A("v_lshl_add_u32 v2, v3, 8, v2")
    A("v_and_b32 v3, 15, v1")
    A("v_lshl_add_u32 v2, v3, 4, v2")
    E = AR
    for T in range(7):
        o = E + 32 + 4 * (T & 1)
        for n in range(2):
            g_, u_ = acc(T, 0, n), acc(T, 1, n); e = E + 4 * n
            for h_ in range(2):
                A(f"v_pk_mul_f32 v[{e+2*h_}:{e+2*h_+1}], v[{g_+2*h_}:{g_+2*h_+1}], v[{GS+4*n+2}:{GS+4*n+3}] op_sel:[0,0] op_sel_hi:[1,0]")
        for n in range(2):
            g_, u_ = acc(T, 0, n), acc(T, 1, n); e = E + 4 * n
            for j in range(4): A(f"v_exp_f32 v{e+j}, v{e+j}")
            for h_ in range(2):
                A(f"v_pk_mul_f32 v[{g_+2*h_}:{g_+2*h_+1}], v[{g_+2*h_}:{g_+2*h_+1}], v[{u_+2*h_}:{u_+2*h_+1}]")
        for n in range(2):
            e = E + 4 * n
            for h_ in range(2):
                A(f"v_pk_fma_f32 v[{e+2*h_}:{e+2*h_+1}], v[{e+2*h_}:{e+2*h_+1}], v[{GS+4*n}:{GS+4*n+1}], v[{GS+4*n}:{GS+4*n+1}] op_sel:[0,0,0] op_sel_hi:[1,0,0]")
        for n in range(2):
            e = E + 4 * n
            for j in range(4): A(f"v_rcp_f32 v{e+j}, v{e+j}")
        for n in range(2):
            g_ = acc(T, 0, n); e = E + 4 * n
            for h_ in range(2):
                A(f"v_pk_mul_f32 v[{g_+2*h_}:{g_+2*h_+1}], v[{g_+2*h_}:{g_+2*h_+1}], v[{e+2*h_}:{e+2*h_+1}]")
        for n in range(2):
            g_ = acc(T, 0, n)
            for h_ in range(2):
                A(f"v_cvt_pk_bf16_f32 v{o+2*n+h_}, v{g_+2*h_}, v{g_+2*h_+1}")
        A(f"v_permlane16_swap_b32 v{o}, v{o+2}")
        A(f"v_permlane16_swap_b32 v{o+1}, v{o+3}")
        A(f"buffer_store_dwordx4 v[{o}:{o+3}], v2, s[8:11], s24 offen offset:{512*T} sc1"); vm.issue("hst")
        if T < 6:
            for _ in range(opt.get("k3_epw2", 3)): pop_vm(side2)
    print("w2 loads left after epilogue:", sum(1 for x in side2 if x[0][1]))
    while side2: pop_vm(side2)
    if diag: stamp(A, diag, 3)
    vm.wait("hst")
    A("s_barrier")
    if diag: stamp(A, diag, 4)
    A("s_cmp_lg_u32 s12, 0")
    A("s_cbranch_scc1 L_k3_synced")
    A("s_mov_b64 exec, 1")
    A("s_lshl_b32 s24, s13, 10")
    A(f"s_add_u32 s24, s24, {FLAG_OFF}")
    A("v_mov_b32 v2, s24")
    A("v_mov_b32 v3, 1")
    A("global_atomic_add v2, v3, s[4:5] sc1")
    A("s_lshr_b32 s24, s15, 1")
    A("s_lshl_b32 s24, s24, 10")
    A(f"s_add_u32 s24, s24, {FLAG_OFF}")
    A("v_mov_b32 v2, s24")
    A("s_mov_b32 s25, 0")
    A("L_k3_poll:")
    A("global_load_dword v3, v2, s[4:5] sc1")
    A("s_add_u32 s25, s25, 1")
    A("s_waitcnt vmcnt(0)")
    A("v_readfirstlane_b32 s26, v3")
    A("s_cmp_ge_u32 s26, 16")
    A("s_cbranch_scc1 L_k3_polled")
    A("s_cmp_lt_u32 s25, 0x100000")
    A("s_cbranch_scc1 L_k3_poll")
    A("L_k3_polled:")
    A("s_mov_b64 exec, -1")
    A("L_k3_synced:")
    A("s_barrier")
    if diag: stamp(A, diag, 5)
    AC2 = 16
    HV = 80
    slots = [HV + 4 * i for i in range(37)] + [256 + 224 + 4 * i for i in range(8)] + [232 + 4 * i for i in range(6)]
    NS = len(slots)
    HA = 228
    hav = [228, 230, 231, 7]
    for nu in range(4):
        A(f"s_add_u32 s24, s12, {nu}")
        A("s_and_b32 s24, s24, 3")
        A("s_lshl_b32 s25, s15, 2")
        A("s_add_u32 s24, s24, s25")
        A(f"s_mul_i32 s24, s24, {HID_STRIDE}")
        A(f"s_add_u32 s24, s24, {HID_OFF}")
        A(f"v_add_u32 v{hav[nu]}, s24, v{VL}")
    A("s_lshl_b32 s40, s47, 10")
    hfl = opt.get("k3_hld", "sc1")
    def ldH(i):
        P, nu = divmod(i, 4)
        rg = slots[i % NS]
        if P and nu == 0:
            A("s_add_u32 s40, s40, 1024")
            A(f"s_cmp_ge_u32 s40, {56*1024}")
            A("s_cselect_b32 s40, 0, s40")
        A(f"buffer_load_dwordx4 {r(rg,4)}, v{hav[nu]}, s[8:11], s40 offen {hfl}"); vm.issue(("H", i))
    nld = opt.get("k3_hpre", 12)
    for i in range(nld): ldH(i)
    A("v_lshrrev_b32 v2, 4, v1")
    A("v_bfe_u32 v3, v1, 2, 2")
    A("v_lshl_add_u32 v3, v2, 4, v3")
    A("v_lshlrev_b32 v3, 6, v3")
    A("v_and_b32 v4, 3, v1")
    A("v_lshl_add_u32 v3, v4, 3, v3")
    A("s_lshr_b32 s24, s12, 1")
    A("s_lshl_b32 s24, s24, 12")
    A("s_and_b32 s25, s12, 1")
    A("s_lshl_b32 s25, s25, 5")
    A("s_add_u32 s24, s24, s25")
    A(f"s_add_u32 s24, s24, {HTL}")
    A("v_add_u32 v3, s24, v3")
    A("v_xor_b32 v4, 32, v3")
    for rho in range(4):
        A(f"ds_read_b64_tr_b16 v[{8+2*rho}:{9+2*rho}], v{3 if rho < 2 else 4} offset:{256*rho}"); lg.issue("h")
    A("s_lshl_b32 s24, s15, 16")
    A("s_lshl_b32 s25, s12, 14")
    A("s_add_u32 s24, s24, s25")
    A("s_lshl_b32 s25, s16, 7")
    A("s_add_u32 s24, s24, s25")
    A("v_and_b32 v5, 15, v1")
    A("v_lshlrev_b32 v5, 10, v5")
    A("v_lshl_add_u32 v5, v2, 5, v5")
    A("v_add_u32 v5, s24, v5")
    for P in range(14):
        for nu in range(4):
            i = 4 * P + nu
            vm.wait(("H", i))
            for dt in range(4):
                d = AC2 + 16 * nu + 4 * dt
                c = "0" if P == 0 else f"v[{d}:{d+3}]"
                w = 4 * (4 * P + dt)
                A(f"v_mfma_f32_16x16x32_bf16 v[{d}:{d+3}], a[{w}:{w+3}], {r(slots[i % NS],4)}, {c}")
                if dt == 0 and nld < 56:
                    assert nld - NS < i
                    ldH(nld); nld += 1
    if diag: stamp(A, diag, 6)
    for nu in range(1, 4):
        A(f"s_add_u32 s24, s12, {nu}")
        A("s_and_b32 s24, s24, 3")
        A("s_mul_i32 s24, s24, 12288")
        A(f"v_add_u32 v6, s24, v{VL}")
        for dt in range(4):
            d = AC2 + 16 * nu + 4 * dt
            A(f"ds_write_b128 v6, v[{d}:{d+3}] offset:{(nu-1)*4096 + dt*1024}"); lg.issue()
    A("s_mul_i32 s24, s12, 12288")
    A(f"v_add_u32 v6, s24, v{VL}")
    lg.wait_all()
    A("s_barrier")
    for k in range(12):
        A(f"ds_read_b128 v[{80+4*k}:{83+4*k}], v6 offset:{1024*k}"); lg.issue(("R", k))
    for j in range(8):
        A(f"v_lshlrev_b32 v{128+2*j}, 16, v{8+j}")
        A(f"v_and_b32 v{129+2*j}, s38, v{8+j}")
    for k in range(12):
        lg.wait(("R", k))
        d = AC2 + 4 * (k % 4)
        for h_ in range(2):
            A(f"v_pk_add_f32 v[{d+2*h_}:{d+2*h_+1}], v[{d+2*h_}:{d+2*h_+1}], v[{80+4*k+2*h_}:{81+4*k+2*h_}]")
    for r_ in range(4):
        for h_ in range(2):
            j = 2 * r_ + h_
            A(f"v_cvt_pk_bf16_f32 v7, v{AC2+8*h_+r_}, v{AC2+8*h_+4+r_}")
            A(f"v_lshlrev_b32 v32, 16, v7")
            A(f"v_and_b32 v33, s38, v7")
            A(f"v_pk_add_f32 v[32:33], v[32:33], v[{128+2*j}:{129+2*j}]")
            if opt.get("perturb") and j == 0:
                A("v_cmp_eq_u32 vcc, 0, v5")
                A(f"v_mov_b32 v34, {float(opt['perturb'])!r}")
                A("v_cndmask_b32 v34, 0, v34, vcc")
                A("v_add_f32 v32, v32, v34")
            A(f"v_cvt_pk_bf16_f32 v{40+j}, v32, v33")
    A("global_store_dwordx4 v5, v[40:43], s[6:7]")
    A("global_store_dwordx4 v5, v[44:47], s[6:7] offset:16")
    if diag:
        A("s_cmp_lg_u32 s12, 0")
        A("s_cbranch_scc1 L_k3_end")
        stamp(A, diag, 7)
        A("s_waitcnt vmcnt(0)")
        stamp(A, diag, 8)
        stamp_flush(A, diag, 4, 16, 4, 60)
    A("L_k3_end:")
    A("s_endpgm")
    lines = A.finish()
    return [(lines, kernel_desc("k3_kernel", 512, 102, 256), f"; @launch kernel=k3_kernel grid=(256,1,1) block=(256,1,1) lds={K3_LDS}")]
```

```python
UX_STRIDE = 16384 + 256
UX_OFF   = 0
HT_OFF   = 0x480000
HT_STRIDE = 32768 + 256
W13_OFF  = 0x700000
CS_OFF   = 0xB00000
W2_OFF   = 0xC00000
HID_OFF  = 0x1000000
HID_STRIDE = 56 * 1024
FLAG_OFF = 0x1800000
STAMP_OFF = 0x1900000
WS_USED  = 0x1A00000
KR_OFF   = 0xE00000
KR_CH    = 3264
KR_STRIDE = 6656

def bf16_round_int(l):
    import numpy as np
    u = np.array([l], dtype=np.float32).view(np.uint32)[0]
    u = (int(u) + 0x7fff + ((int(u) >> 16) & 1)) >> 16
    return u
def cidx(l):
    return l if l < 128 else bf16_round_int(l) - 17024
def record_index():
    def near(par):
        o = []
        for x in range(560):
            l = 534 + par - x
            o.append(cidx(l) if 0 <= l <= 514 else -1)
        for x in range(48):
            l = 1046 + par - x
            o.append(512 if l in (1027, 1028) else -1)
        return o
    out = near(0)
    for x in range(256):
        m = 320 - x
        out.append(384 + m - 128 if 129 <= m <= 256 else -1)
    for x in range(160):
        m = 256 - x
        out.append(512 + m - 128 if 129 <= m <= 256 else -1)
    out += near(1)
    assert len(out) == 1632
    return out
```

```python
from asmlib import *
from layout import *

LOG2E = 0x3fb8aa3b
INV2PI = 0x3e22f983
KC1 = 65536
KC_CH = 1536
K1_LDS = KC1 + 2 * KC_CH

def stamp(A, on, slot, sreg=70):
    if on == "cyc": A(f"s_memtime s[{sreg+2*slot}:{sreg+2*slot+1}]")
    elif on: A(f"s_memrealtime s[{sreg+2*slot}:{sreg+2*slot+1}]")

def stamp_flush(A, on, kid, nslots, ws, vtmp, sreg=70, wave_sreg=None):
    if not on: return
    A("s_waitcnt lgkmcnt(0)")
    A(f"s_lshl_b32 s69, s2, 6")
    A(f"s_add_u32 s69, s69, {STAMP_OFF + kid * 16384}")
    if wave_sreg is not None:
        A(f"s_lshr_b32 s68, s{wave_sreg}, 2")
        A(f"s_lshl_b32 s68, s68, 14")
        A(f"s_add_u32 s69, s69, s68")
    A(f"v_mov_b32 v{vtmp}, s69")
    for i in range(nslots):
        A(f"v_mov_b32 v{vtmp+1}, s{sreg+2*i}")
        A(f"global_store_dword v{vtmp}, v{vtmp+1}, s[{ws}:{ws+1}] offset:{4*i}")

def probe_wait(A, opt, where, ws, lbl):
    if opt.get("probe") != where: return
    A(f"s_add_u32 s60, s{ws}, {STAMP_OFF + 0x80000}")
    A(f"s_addc_u32 s61, s{ws+1}, 0")
    A("s_load_dword s62, s[60:61], 0")
    A(f"{lbl}:")
    A("s_memrealtime s[64:65]")
    A("s_waitcnt lgkmcnt(0)")
    A("s_sub_u32 s64, s64, s62")
    A(f"s_cmp_lt_u32 s64, {opt['probe_c']}")
    A(f"s_cbranch_scc1 {lbl}")

def cmul(A, d, x, y, t):
    A(f"v_pk_mul_f32 v[{t}:{t+1}], v[{x}:{x+1}], v[{y}:{y+1}] op_sel:[0,0] op_sel_hi:[1,0]")
    A(f"v_pk_fma_f32 v[{d}:{d+1}], v[{x}:{x+1}], v[{y}:{y+1}], v[{t}:{t+1}] op_sel:[1,1,0] op_sel_hi:[0,1,1] neg_lo:[1,0,0]")

def pc_addr(A, label, here, vlo, voff, s0=26):
    A(f"s_getpc_b64 s[{s0}:{s0+1}]")
    A(f"{here}:")
    A(f"s_add_u32 s{s0}, s{s0}, {label}-{here}")
    A(f"s_addc_u32 s{s0+1}, s{s0+1}, 0")
    A(f"v_mov_b32 v{vlo+1}, s{s0+1}")
    A(f"v_add_co_u32 v{vlo}, vcc, s{s0}, v{voff}")
    A(f"v_addc_co_u32 v{vlo+1}, vcc, 0, v{vlo+1}, vcc")

def gen_kgen(A, opt):
    diag = opt.get("diag", False)
    st = opt.get("k1_kstore", "")
    SC, TA, TB = 116, 100, 104
    IX = 106
    A("s_load_dwordx2 s[4:5], s[0:1], 104")
    A("s_load_dwordx8 s[8:15], s[0:1], 8")
    A("s_load_dwordx2 s[16:17], s[0:1], 40")
    A("v_lshrrev_b32 v1, 6, v0")
    A("s_and_b32 s27, s2, 7")
    A("v_readfirstlane_b32 s30, v1")
    A("v_and_b32 v1, 63, v0")
    A("s_lshl_b32 s27, s27, 5")
    A("s_lshr_b32 s28, s2, 3")
    A("s_add_u32 s29, s27, s28")
    A("s_lshl_b32 s28, s29, 9")
    A("v_lshl_add_u32 v6, v0, 1, s28")
    A("s_lshl_b32 s28, s29, 2")
    A("v_lshrrev_b32 v7, 7, v0")
    A("v_lshl_add_u32 v7, v7, 1, s28")
    A("v_min_u32 v8, 203, v0")
    A("v_lshlrev_b32 v8, 4, v8")
    pc_addr(A, "L_ridx", "L_k1_pc0", 10, 8)
    A("s_mov_b32 s36, 0xffff0000")
    A("s_waitcnt lgkmcnt(0)")
    for k in range(4):
        A(f"global_load_ushort v{2+k}, v6, s[{8+2*k}:{9+2*k}]")
    A("global_load_ushort v6, v7, s[16:17]")
    A(f"global_load_dwordx4 v[{IX}:{IX+3}], v[10:11], off")
    T0, T1, T2, T3 = 90, 91, 92, 93
    A("s_lshr_b32 s51, s30, 1")
    A("s_and_b32 s52, s30, 1")
    A(f"v_mov_b32 v{T0}, {KC1}")
    A(f"v_mov_b32 v{T1}, 0")
    A(f"ds_write_b32 v{T0}, v{T1}")
    A(f"ds_write_b32 v{T0}, v{T1} offset:{KC_CH}")
    A(f"v_bfe_u32 v{T0}, v0, 1, 2")
    A(f"v_bfe_u32 v{T1}, v0, 3, 1")
    A(f"v_lshlrev_b32 v{T1}, 1, v{T1}")
    A(f"v_xor_b32 v{T0}, v{T0}, v{T1}")
    A(f"v_and_b32 v{T1}, 127, v0")
    A(f"v_lshlrev_b32 v{T1}, 6, v{T1}")
    A(f"v_lshl_add_u32 v{T1}, v{T0}, 4, v{T1}")
    A("s_lshl_b32 s53, s51, 15")
    A(f"v_add_u32 v110, s53, v{T1}")
    for c in range(1, 4): A(f"v_xor_b32 v{110+c}, {16*c}, v110")
    A(f"v_lshrrev_b32 v{T0}, 4, v1")
    A(f"v_bfe_u32 v{T1}, v1, 2, 2")
    A(f"v_lshl_add_u32 v{T1}, v{T0}, 3, v{T1}")
    A(f"v_lshlrev_b32 v{T1}, 6, v{T1}")
    A(f"v_bfe_u32 v{T2}, v1, 1, 1")
    A(f"v_bfe_u32 v{T3}, v1, 3, 2")
    A(f"v_xor_b32 v{T2}, v{T2}, v{T3}")
    A(f"v_lshl_add_u32 v{T1}, v{T2}, 4, v{T1}")
    A(f"v_and_b32 v{T2}, 1, v1")
    A(f"v_lshl_add_u32 v{T1}, v{T2}, 3, v{T1}")
    A(f"v_add_u32 v{T1}, s53, v{T1}")
    A(f"v_xor_b32 v{TA+1}, 32, v{T1}")
    A(f"v_mov_b32 v{TA}, v{T1}")
    A("s_lshl_b32 s54, s52, 5")
    A(f"v_xor_b32 v{TB}, s54, v{T1}")
    A(f"v_xor_b32 v{TB+1}, 32, v{TB}")
    A(f"v_and_b32 v{T1}, 15, v1")
    A("s_lshl_b32 s54, s52, 4")
    A(f"v_add_u32 v{T1}, s54, v{T1}")
    A(f"v_or_b32 v{T3}, 0x0c0c0c00, v{T0}")
    A(f"s_mul_i32 s53, s51, {KC_CH}")
    A(f"s_add_u32 s53, s53, {KC1 + 16}")
    tabs = {0: dict(base=[0, 4, 256, 384], shb=[3, 3, 2, 1], o=[[1, 1, 1, 1], [2, 2, 2, 64], [3, 3, 3, 65]]),
            1: dict(base=[512, 640, 680, 680], shb=[0, 0, 0, 0], o=[[32, 40, 0, 0], [64, 40, 0, 0], [96, 40, 0, 0]])}
    def lut(vals, dst, scale=1):
        lo = sum((vals[i] // scale) << (8 * i) for i in range(4))
        A(f"s_mov_b32 s54, {lo:#x}")
        A(f"v_perm_b32 v{dst}, v{dst}, s54, v{T3}")
    for rh in range(2):
        tb = tabs[rh]; sc = SC + 4 * rh
        if rh == 0:
            lut(tb["shb"], 94); A(f"v_lshlrev_b32 v95, v94, v{T1}")
        else: A(f"v_mov_b32 v95, v{T1}")
        lut(tb["base"], 94, 4)
        A(f"v_lshl_add_u32 v95, v94, 2, v95")
        A(f"v_lshl_add_u32 v{sc}, v95, 1, s53")
        for i in range(3):
            if rh == 0 and i == 0: A(f"v_add_u32 v{sc+1}, 2, v{sc}")
            else:
                lut(tb["o"][i], 94); A(f"v_lshl_add_u32 v{sc+1+i}, v94, 1, v{sc}")
    A(f"s_mov_b32 s43, {LOG2E:#x}")
    stamp(A, diag, 1)
    A("s_waitcnt vmcnt(1)")
    stamp(A, diag, 2)
    for k in (0, 4, 1, 2, 3): A(f"v_lshlrev_b32 v{2+k}, 16, v{2+k}")
    A("v_mul_f32 v2, s43, v2")
    A("v_mul_f32 v6, s43, v6")
    A("v_exp_f32 v2, v2")
    A("v_exp_f32 v6, v6")
    A("v_cvt_pk_bf16_f32 v2, v2, v6")
    A("v_and_b32 v6, s36, v2")
    A("v_lshlrev_b32 v2, 16, v2")
    A("v_mul_f32 v2, v2, v6")
    A("v_mul_f32 v3, v3, v6")
    A("v_mul_f32 v2, -v2, s43")
    A(f"v_mul_f32 v3, {INV2PI:#x}, v3")
    A("v_add_f32 v6, v6, v6")
    H = 20
    A(f"v_mul_f32 v{H}, v4, v6")
    A(f"v_mul_f32 v{H+1}, v5, v6")
    E1, E8, E256, E16 = 8, 10, 12, 14
    for p, e in ((8.0, E8), (1.0, E1), (256.0, E256)):
        if p == 1.0:
            A(f"v_exp_f32 v16, v2")
            A(f"v_fract_f32 v17, v3")
        else:
            A(f"v_mul_f32 v16, {p!r}, v2")
            A(f"v_mul_f32 v17, {p!r}, v3")
            A(f"v_exp_f32 v16, v16")
            A(f"v_fract_f32 v17, v17")
        A(f"v_cos_f32 v{e}, v17")
        A(f"v_sin_f32 v{e+1}, v17")
        A(f"v_pk_mul_f32 v[{e}:{e+1}], v[{e}:{e+1}], v[16:17] op_sel:[0,0] op_sel_hi:[1,0]")
    cmul(A, E16, E8, E8, 16)
    P0, P1, TP = 62, E8, 66
    RE, IM = 72, 76
    Lops, Hops = [], []
    def rec(lst):
        B = Asm(); lst.append(B); return B
    for k in range(16):
        B = rec(Lops)
        grp, j = divmod(k, 4)
        o = 8 * (grp & 1)
        if k == 0:
            B(f"v_cvt_pk_bf16_f32 v{RE}, 1.0, v{P1}")
            B(f"v_cvt_pk_bf16_f32 v{IM}, 0, v{P1+1}")
            cmul(B, P1, P1, E16, TP + 2)
            continue
        p0 = E16 if k == 1 else P0
        B(f"v_cvt_pk_bf16_f32 v{RE+o+j}, v{p0}, v{P1}")
        B(f"v_cvt_pk_bf16_f32 v{IM+o+j}, v{p0+1}, v{P1+1}")
        if k < 15:
            B(f"v_pk_mul_f32 v[{TP}:{TP+1}], v[{p0}:{p0+1}], v[{E16}:{E16+1}] op_sel:[0,0] op_sel_hi:[1,0]")
            B(f"v_pk_mul_f32 v[{TP+2}:{TP+3}], v[{P1}:{P1+1}], v[{E16}:{E16+1}] op_sel:[0,0] op_sel_hi:[1,0]")
            B(f"v_pk_fma_f32 v[{P0}:{P0+1}], v[{p0}:{p0+1}], v[{E16}:{E16+1}], v[{TP}:{TP+1}] op_sel:[1,1,0] op_sel_hi:[0,1,1] neg_lo:[1,0,0]")
            B(f"v_pk_fma_f32 v[{P1}:{P1+1}], v[{P1}:{P1+1}], v[{E16}:{E16+1}], v[{TP+2}:{TP+3}] op_sel:[1,1,0] op_sel_hi:[0,1,1] neg_lo:[1,0,0]")
        if j == 3:
            B(f"ds_write_b128 v{110+grp}, v[{RE+o}:{RE+o+3}]")
            B(f"ds_write_b128 v{110+grp}, v[{IM+o}:{IM+o+3}] offset:8192")
    src = {1: (0, E1), 2: (1, E1), 3: (2, E1), 4: (3, E1), 5: (4, E1), 6: (5, E1), 7: (6, E1),
           8: (0, E256), 9: (2, E256), 10: (4, E256), 11: (6, E256), 12: (8, E256), 13: (10, E256), 14: (12, E256), 15: (13, E256),
           16: (14, E256), 17: (16, E256), 18: (17, E256), 19: (18, E256), 20: (19, E256)}
    HR, HI = 124, 128
    for i in range(1, 21):
        B = rec(Hops)
        cmul(B, H + 2 * i, H + 2 * src[i][0], src[i][1], TP + 4)
        if i % 2 == 1 or i == 20:
            lo = i - 1 if i % 2 == 1 else i
            j = (lo // 2) % 4; grp = lo // 8
            o = 8 * (grp & 1)
            B(f"v_cvt_pk_bf16_f32 v{HR+o+j}, v{H+2*lo}, v{H+2*i}")
            B(f"v_cvt_pk_bf16_f32 v{HI+o+j}, -v{H+2*lo+1}, -v{H+2*i+1}")
            if j == 3 or i == 20:
                B(f"ds_write_b128 v{110+grp}, v[{HR+o}:{HR+o+3}] offset:16384")
                B(f"ds_write_b128 v{110+grp}, v[{HI+o}:{HI+o+3}] offset:24576")
    li = hi_ = 0
    while li < len(Lops) or hi_ < len(Hops):
        if hi_ < len(Hops): A.lines += Hops[hi_].lines; hi_ += 1
        if li < len(Lops): A.lines += Lops[li].lines; li += 1
        if hi_ < len(Hops) and li % 4 == 0: A.lines += Hops[hi_].lines; hi_ += 1
    A("s_waitcnt lgkmcnt(0)")
    stamp(A, diag, 3)
    A("s_barrier")
    def rd(kk):
        f = 2 + 12 * (kk % 4)
        for rho in range(2):
            A(f"ds_read_b64_tr_b16 v[{f+2*rho}:{f+2*rho+1}], v{TB+rho} offset:{2048*kk+256*rho}")
        for rh in range(2):
            for rho in range(2):
                A(f"ds_read_b64_tr_b16 v[{f+4+4*rh+2*rho}:{f+5+4*rh+2*rho}], v{TA+(rh^rho)} offset:{16384+2048*kk+256*rho}")
    rd(0); rd(1)
    for kk in range(8):
        f = 2 + 12 * (kk % 4)
        if kk + 2 < 8:
            rd(kk + 2); A("s_waitcnt lgkmcnt(12)")
        else: A(f"s_waitcnt lgkmcnt({6 if kk == 6 else 0})")
        for rh in range(2):
            A(f"v_mfma_f32_16x16x32_bf16 v[{52+4*rh}:{55+4*rh}], v[{f+4+4*rh}:{f+7+4*rh}], v[{f}:{f+3}], {'0' if kk == 0 else 'v[%d:%d]' % (52+4*rh, 55+4*rh)}")
    A("s_waitcnt vmcnt(0)")
    for j in range(4):
        A(f"v_and_b32 v{64+2*j}, 0xffff, v{IX+j}")
        A(f"v_lshrrev_b32 v{65+2*j}, 16, v{IX+j}")
    for j in range(8): A(f"v_add_u32 v{64+j}, {KC1}, v{64+j}")
    for rh in range(2):
        A(f"v_cvt_pk_bf16_f32 v60, v{52+4*rh}, v{53+4*rh}")
        A(f"v_cvt_pk_bf16_f32 v61, v{54+4*rh}, v{55+4*rh}")
        A(f"ds_write_b16 v{SC+4*rh}, v60")
        A(f"ds_write_b16_d16_hi v{SC+4*rh+1}, v60")
        A(f"ds_write_b16 v{SC+4*rh+2}, v61")
        A(f"ds_write_b16_d16_hi v{SC+4*rh+3}, v61")
    A(f"s_mul_i32 s53, s2, {KR_STRIDE}")
    A(f"s_add_u32 s53, s53, {KR_OFF}")
    A("v_min_u32 v8, 203, v0")
    A("v_lshl_add_u32 v8, v8, 4, s53")
    A("s_waitcnt lgkmcnt(0)")
    A("s_barrier")
    stamp(A, diag, 4)
    for ch in range(2):
        for j in range(8):
            A(f"ds_read_u16 v{10+8*ch+j}, v{64+j} offset:{KC_CH*ch}")
    for ch in range(2):
        A(f"s_waitcnt lgkmcnt({8 if ch == 0 else 0})")
        for j in range(4):
            A(f"v_lshl_or_b32 v{28+4*ch+j}, v{11+8*ch+2*j}, 16, v{10+8*ch+2*j}")
        A(f"global_store_dwordx4 v8, v[{28+4*ch}:{31+4*ch}], s[4:5] offset:{KR_CH*ch} {st}")
    if opt.get("probe"):
        A("s_cmp_lg_u32 s2, 0")
        A("s_cbranch_scc1 L_k1_noprobe")
        A(f"v_mov_b32 v60, {STAMP_OFF + 0x80000}")
        A("v_mov_b32 v61, s66")
        A("global_store_dword v60, v61, s[4:5]")
        A("L_k1_noprobe:")
    if diag:
        stamp(A, diag, 5)
        A("s_waitcnt vmcnt(0)")
        stamp(A, diag, 6)
        stamp_flush(A, diag, 0, 7, 4, 60)
    A("s_endpgm")

def gen_k1(opt):
    A = Asm()
    diag = opt.get("diag", False)
    st = opt.get("k1_store", "")
    A(kernel_header("k1_kernel"))
    stamp(A, diag, 0)
    if opt.get("probe"): A("s_memrealtime s[66:67]")
    if opt.get("k1_selfpf", True):
        A("v_lshlrev_b32 v96, 5, v0")
        pc_addr(A, "L_k1_pf", "L_k1_pf", 98, 96)
        A("global_load_dword v97, v[98:99], off")
    A("s_cmp_ge_u32 s2, 256")
    A("s_cbranch_scc1 L_k1_ln")
    gen_kgen(A, opt)
    A("L_k1_ln:")
    A("s_cmp_ge_u32 s2, 512")
    A("s_cbranch_scc1 L_k1_end")
    A("s_load_dwordx2 s[4:5], s[0:1], 0")
    A("s_load_dwordx2 s[6:7], s[0:1], 104")
    A("s_load_dwordx2 s[18:19], s[0:1], 48")
    A("s_sub_u32 s12, s2, 256")
    A("s_lshl_b32 s3, s12, 13")
    A("v_lshrrev_b32 v1, 6, v0")
    A("v_and_b32 v2, 63, v0")
    A("v_lshlrev_b32 v3, 11, v1")
    A("v_lshl_add_u32 v3, v2, 4, v3")
    A("v_add_u32 v3, s3, v3")
    A("v_lshl_add_u32 v4, v0, 2, s3")
    A("v_add_u32 v5, 4096, v4")
    A("s_mov_b32 s20, 0x3f803f80")
    A("s_mov_b32 s21, 0xffff0000")
    A("s_mov_b32 s22, 0x05040100")
    A("s_mov_b32 s23, 0x07060302")
    A("s_waitcnt lgkmcnt(0)")
    A("global_load_dwordx4 v[8:11], v3, s[4:5]")
    A("global_load_dwordx4 v[12:15], v3, s[4:5] offset:1024")
    for r_ in range(8):
        A(f"global_load_dword v{16+r_}, v{4 if r_ < 4 else 5}, s[4:5] offset:{(r_ % 4) * 1024}")
    nlater = 0
    if opt.get("k1_prefetch", True):
        A("v_lshlrev_b32 v7, 2, v0")
        A("global_load_dword v69, v7, s[18:19]")
        A("s_lshr_b32 s28, s12, 3")
        A("s_lshl_b32 s28, s28, 12")
        A("s_min_u32 s28, s28, L_code_end-L_code_begin-4096")
        A("v_lshl_add_u32 v68, v0, 4, s28")
        pc_addr(A, "L_code_begin", "L_k1_pc", 70, 68)
        A("global_load_dwordx4 v[72:75], v[70:71], off")
        nlater += 2
    A("s_cmp_ge_u32 s12, 16")
    A("s_cbranch_scc1 L_k1_nz")
    A("s_lshl_b32 s24, s12, 10")
    A(f"s_add_u32 s24, s24, {FLAG_OFF}")
    A("v_lshl_add_u32 v76, v0, 2, s24")
    A("v_mov_b32 v77, 0")
    A("global_store_dword v76, v77, s[6:7]")
    A("s_waitcnt vmcnt(0)")
    A("L_k1_nz:")
    A(f"s_waitcnt vmcnt({8 + nlater})")
    stamp(A, diag, 1)
    A("v_dot2_f32_bf16 v24, v8, s20, 0")
    A("v_dot2_f32_bf16 v25, v12, s20, 0")
    A("v_dot2_f32_bf16 v26, v8, v8, 0")
    A("v_dot2_f32_bf16 v27, v12, v12, 0")
    for j in range(1, 4):
        A(f"v_dot2_f32_bf16 v24, v{8+j}, s20, v24")
        A(f"v_dot2_f32_bf16 v25, v{12+j}, s20, v25")
        A(f"v_dot2_f32_bf16 v26, v{8+j}, v{8+j}, v26")
        A(f"v_dot2_f32_bf16 v27, v{12+j}, v{12+j}, v27")
    for mod in ("row_shr:1 row_mask:0xf", "row_shr:2 row_mask:0xf", "row_shr:4 row_mask:0xf", "row_shr:8 row_mask:0xf",
                "row_bcast:15 row_mask:0xa", "row_bcast:31 row_mask:0xc"):
        for k in range(4):
            A(f"v_add_f32_dpp v{24+k}, v{24+k}, v{24+k} {mod} bank_mask:0xf")
    A("s_mov_b32 s24, 0x3b000000")
    for k in range(4): A(f"v_mul_f32 v{24+k}, s24, v{24+k}")
    A("v_fma_f32 v26, -v24, v24, v26")
    A("v_fma_f32 v27, -v25, v25, v27")
    A("v_max_f32 v26, 0, v26")
    A("v_max_f32 v27, 0, v27")
    A("v_cvt_pk_bf16_f32 v28, v24, v25")
    A("v_cvt_pk_bf16_f32 v29, v26, v27")
    A("v_lshlrev_b32 v24, 16, v28")
    A("v_and_b32 v25, s21, v28")
    A("v_lshlrev_b32 v26, 16, v29")
    A("v_and_b32 v27, s21, v29")
    A("v_add_f32 v26, 0x3727c5ac, v26")
    A("v_add_f32 v27, 0x3727c5ac, v27")
    A("v_cvt_pk_bf16_f32 v29, v26, v27")
    A("v_lshlrev_b32 v26, 16, v29")
    A("v_and_b32 v27, s21, v29")
    A("v_sqrt_f32 v26, v26")
    A("v_sqrt_f32 v27, v27")
    A("v_cvt_pk_bf16_f32 v29, v26, v27")
    A("v_lshlrev_b32 v26, 16, v29")
    A("v_and_b32 v27, s21, v29")
    A("v_rcp_f32 v26, v26")
    A("v_rcp_f32 v27, v27")
    A("v_lshlrev_b32 v30, 4, v1")
    A("s_mov_b32 exec_lo, 0")
    A("s_mov_b32 exec_hi, 0x80000000")
    A("ds_write_b128 v30, v[24:27]")
    A("s_mov_b64 exec, -1")
    A(f"s_waitcnt vmcnt({nlater})")
    for r_ in range(8):
        A(f"v_lshlrev_b32 v{32+r_}, 16, v{16+r_}")
        A(f"v_and_b32 v{40+r_}, s21, v{16+r_}")
    for j in range(4):
        A(f"v_perm_b32 v{56+j}, v{17+2*j}, v{16+2*j}, s22")
        A(f"v_perm_b32 v{8+j}, v{17+2*j}, v{16+2*j}, s23")
    A(f"s_mul_i32 s3, s12, {UX_STRIDE}")
    A("v_lshl_add_u32 v4, v0, 6, s3")
    A(f"global_store_dwordx4 v4, v[56:59], s[6:7] offset:32 {st}")
    A(f"global_store_dwordx4 v4, v[8:11], s[6:7] offset:48 {st}")
    A("v_mov_b32 v5, 0")
    A("s_waitcnt lgkmcnt(0)")
    A("s_barrier")
    for j in range(4):
        A(f"ds_read_b128 v[{16+4*j}:{19+4*j}], v5 offset:{16*j}")
    for j in range(4):
        A(f"s_waitcnt lgkmcnt({3-j})")
        cb = ((32, 48), (40, 52))
        for base, dst in cb:
            x = base + 2 * j
            A(f"v_pk_add_f32 v[{x}:{x+1}], v[{x}:{x+1}], v[{16+4*j}:{17+4*j}] neg_lo:[0,1] neg_hi:[0,1]")
        for base, dst in cb:
            x = base + 2 * j
            A(f"v_cvt_pk_bf16_f32 v{dst+j}, v{x}, v{x+1}")
        for base, dst in cb:
            x = base + 2 * j
            A(f"v_lshlrev_b32 v{x}, 16, v{dst+j}")
            A(f"v_and_b32 v{x+1}, s21, v{dst+j}")
        for base, dst in cb:
            x = base + 2 * j
            A(f"v_pk_mul_f32 v[{x}:{x+1}], v[{x}:{x+1}], v[{18+4*j}:{19+4*j}]")
        for base, dst in cb:
            x = base + 2 * j
            A(f"v_cvt_pk_bf16_f32 v{dst+j}, v{x}, v{x+1}")
    A(f"global_store_dwordx4 v4, v[48:51], s[6:7] {st}")
    A(f"global_store_dwordx4 v4, v[52:55], s[6:7] offset:16 {st}")
    if diag:
        stamp(A, diag, 2)
        A("s_waitcnt vmcnt(0)")
        stamp(A, diag, 3)
        stamp_flush(A, diag, 0, 4, 6, 60)
    A("L_k1_end:")
    A("s_endpgm")
    lines = A.finish()
    idx = [0 if c < 0 else 16 + 2 * c for c in record_index()]
    lines.append(".p2align 6")
    lines.append("L_ridx:")
    for i in range(0, len(idx), 16):
        lines.append(".short " + ", ".join(str(x) for x in idx[i:i+16]))
    return lines, kernel_desc("k1_kernel", 144, 102, 144), f"; @launch kernel=k1_kernel grid=(512,1,1) block=(256,1,1) lds={K1_LDS}"
```

```python
from asmlib import *
from layout import *
from k1 import stamp, stamp_flush, pc_addr, probe_wait
from k3 import Q

UZ = 48
UL = 0
UDATA = UL + UZ * 64
WL = UL + (UZ + 256 + 4) * 64
W_A4 = 3200 + 128
W_O = [0, 3328, 6656, 6656 + 2176]
W_CH = 6656 + 2 * 2176
KTL = WL + 2 * W_CH
KT_CP = 2112
K2_LDS = 98304

def gen_k2(opt):
    A = Asm()
    diag = opt.get("diag", False)
    st_h = opt.get("k2_store", "sc1")
    st_w = opt.get("k2_wstore", "sc1")
    A(kernel_header("k2_kernel"))
    A("s_cmp_ge_u32 s2, 256")
    A("s_cbranch_scc1 L_k2_end")
    stamp(A, diag, 0)
    A("s_load_dwordx2 s[4:5], s[0:1], 104")
    A("s_load_dwordx2 s[18:19], s[0:1], 48")
    A("s_load_dwordx4 s[20:23], s[0:1], 64")
    A("s_load_dwordx2 s[24:25], s[0:1], 80")
    if opt.get("probe") == "k2":
        A("s_waitcnt lgkmcnt(0)")
        probe_wait(A, opt, "k2", 4, "L_k2_probe")
    A("v_lshrrev_b32 v1, 6, v0")
    A("s_and_b32 s27, s2, 7")
    A("v_readfirstlane_b32 s26, v1")
    A("v_and_b32 v1, 63, v0")
    A("s_lshl_b32 s27, s27, 5")
    A("s_lshr_b32 s28, s2, 3")
    A("s_add_u32 s27, s27, s28")
    A("s_mov_b32 s36, 0xffff0000")
    A("s_bfe_u32 s51, s26, 0x10001")
    A("s_and_b32 s52, s26, 1")
    A("s_cmp_ge_u32 s26, 4")
    A("s_cbranch_scc1 L_k2_uxdma")
    A(f"s_mul_i32 s28, s2, {KR_STRIDE}")
    A(f"s_mul_i32 s29, s51, {KR_CH}")
    A("s_add_u32 s28, s28, s29")
    A("s_lshl_b32 s29, s52, 11")
    A("s_add_u32 s28, s28, s29")
    A(f"s_add_u32 s28, s28, {KR_OFF + 12}")
    A("v_lshl_add_u32 v2, v1, 4, s28")
    A(f"s_mul_i32 s30, s51, {8*KT_CP}")
    A(f"s_mul_i32 s29, s52, {KT_CP}")
    A("s_add_u32 s30, s30, s29")
    A(f"s_add_u32 m0, s30, {KTL}")
    A("s_waitcnt lgkmcnt(0)")
    for s_ in range(4):
        A("global_load_lds_dwordx4 v2, s[4:5]")
        A("global_load_lds_dwordx4 v2, s[4:5] offset:1024")
        if s_ < 3:
            A(f"s_add_u32 m0, s30, {KTL + 2*(s_+1)*KT_CP}")
            A("v_add_u32 v2, -4, v2")
    A("s_lshl_b32 s28, s27, 2")
    A("s_load_dword s41, s[18:19], s28")
    A("s_branch L_k2_common")
    A("L_k2_uxdma:")
    A("v_bfe_u32 v2, v0, 2, 6")
    A("v_lshrrev_b32 v3, 4, v0")
    A("v_xor_b32 v3, v3, v0")
    A("v_and_b32 v3, 3, v3")
    A("s_lshl_b32 s29, s27, 6")
    A("v_lshl_add_u32 v3, v3, 4, s29")
    A(f"s_mov_b32 s31, {UX_STRIDE}")
    A("v_mad_u32_u24 v2, v2, s31, v3")
    A("s_lshl_b32 s30, s26, 10")
    A(f"s_add_u32 m0, s30, {UDATA - 4096}")
    A("s_waitcnt lgkmcnt(0)")
    for i in range(4):
        A("global_load_lds_dwordx4 v2, s[4:5]")
        if i < 3:
            A(f"s_add_u32 m0, s30, {UDATA + 4096*i}")
            A(f"v_add_u32 v2, {64*UX_STRIDE}, v2")
    A("L_k2_common:")
    UB = 4
    A("v_and_b32 v8, 15, v1")
    A("v_lshrrev_b32 v9, 4, v1")
    A("v_lshl_add_u32 v10, v8, 1, v9")
    for mu in range(4):
        A(f"v_add_u32 v11, {UZ - 1 - 4*mu - 32}, v10")
        A("v_bfe_u32 v12, v11, 2, 2")
        A("v_xor_b32 v12, s51, v12")
        A("v_lshlrev_b32 v11, 6, v11")
        A(f"v_lshl_add_u32 v{UB+mu}, v12, 4, v11")
    def ub(idx):
        mu = (-idx) % 4
        off = (4 * idx + 4 * mu + 32) * 64
        assert 0 <= off < 65536 and off % 1024 == 0
        return f"v{UB+mu} offset:{off}"
    A("s_cmp_ge_u32 s26, 4")
    A("s_cbranch_scc1 L_k2_aux")
    vm = Q(A, "vmcnt", 63); lg = Q(A, "lgkmcnt", 15)
    NA, FX, T4, T8 = 32, 100, 104, 128
    ACC, BR, NB = 144, 164, 10
    EU = 204
    A(f"s_mul_i32 s28, s51, {8*KT_CP}")
    A(f"s_add_u32 s28, s28, {KTL}")
    A("v_lshl_add_u32 v12, v9, 4, s28")
    A("v_and_b32 v11, 7, v8")
    A(f"v_mul_u32_u24 v11, {KT_CP}, v11")
    A("v_lshrrev_b32 v13, 3, v8")
    A("v_lshlrev_b32 v13, 4, v13")
    A("v_sub_u32 v11, v11, v13")
    A("v_add_u32 v24, v11, v12")
    A("v_and_b32 v11, 1, v8")
    A(f"v_mul_u32_u24 v11, {4*KT_CP}, v11")
    A("v_lshrrev_b32 v13, 1, v8")
    A("v_lshlrev_b32 v13, 4, v13")
    A("v_sub_u32 v11, v11, v13")
    A("v_add_u32 v25, v11, v12")
    A("v_and_b32 v11, 3, v8")
    A(f"v_mul_u32_u24 v11, {2*KT_CP}, v11")
    A("v_lshrrev_b32 v13, 2, v8")
    A("v_lshlrev_b32 v13, 4, v13")
    A("v_sub_u32 v11, v11, v13")
    A("v_add_u32 v26, v11, v12")
    A("v_bfe_u32 v11, v1, 2, 2")
    A("v_lshl_add_u32 v11, v9, 3, v11")
    A("v_bfe_u32 v12, v1, 2, 1")
    A("v_and_b32 v13, 3, v1")
    A(f"s_mul_i32 s28, s51, {W_CH}")
    A(f"s_add_u32 s28, s28, {WL + 8}")
    A("v_lshl_add_u32 v13, v13, 3, s28")
    A(f"v_mul_u32_u24 v14, {W_O[1]}, v12")
    A("v_lshl_add_u32 v14, v11, 3, v14")
    A("v_add_u32 v16, v13, v14")
    A(f"v_mul_u32_u24 v14, {W_O[3]-W_O[2]}, v12")
    A("v_lshl_add_u32 v14, v11, 4, v14")
    A(f"v_add3_u32 v17, v13, v14, 0")
    A("v_lshrrev_b32 v11, 1, v9")
    A("v_lshl_add_u32 v11, v8, 1, v11")
    A("v_bfe_u32 v12, v8, 1, 2")
    A("v_xor_b32 v12, s51, v12")
    A("v_lshlrev_b32 v11, 6, v11")
    A("v_lshl_add_u32 v11, v12, 4, v11")
    A("v_and_b32 v12, 1, v9")
    A("v_lshl_add_u32 v18, v12, 3, v11")
    A("v_xor_b32 v19, 32, v18")
    A("s_lshr_b32 s55, s27, 1")
    A("s_and_b32 s55, s55, 2")
    A("v_and_b32 v11, 1, v8")
    A("v_lshrrev_b32 v13, 1, v9")
    A("v_lshl_add_u32 v11, v11, 1, v13")
    A("v_xor_b32 v11, s55, v11")
    A("s_lshl_b32 s54, s27, 7")
    A("s_lshl_b32 s53, s51, 6")
    A("s_add_u32 s54, s54, s53")
    A(f"s_add_u32 s54, s54, {HT_OFF}")
    A("v_lshl_add_u32 v11, v11, 4, s54")
    A("v_lshrrev_b32 v13, 1, v8")
    A(f"s_mov_b32 s53, {HT_STRIDE}")
    A("v_mad_u32_u24 v20, v13, s53, v11")
    A(f"s_mov_b32 s53, {8*HT_STRIDE}")
    A("v_mad_u32_u24 v21, v12, s53, v20")
    A("s_waitcnt lgkmcnt(0)")
    A("s_lshl_b32 s42, s41, 16")
    A("s_and_b32 s43, s41, s36")
    A("s_cmp_eq_u32 s51, 0")
    A("s_cselect_b32 s42, s42, s43")
    A("s_waitcnt vmcnt(0)")
    A("s_barrier")
    stamp(A, diag, 1)
    for m in range(17):
        A(f"ds_read_b128 v[{NA+4*m}:{NA+4*m+3}], v24 offset:{16 + 1024 - 64*m}")
    A(f"ds_read_b128 v[{FX}:{FX+3}], v24 offset:{16 + 1120}")
    for dl in range(3, 9):
        A(f"ds_read_b128 v[{T4+4*(dl-3)}:{T4+4*(dl-3)+3}], v25 offset:{2*KT_CP + 1216 + 112 + 64*(8-dl)}")
    for dl in range(4, 8):
        A(f"ds_read_b128 v[{T8+4*(dl-4)}:{T8+4*(dl-4)+3}], v26 offset:{1728 + 48 + 64*(7-dl)}")
    A("s_barrier")
    stamp(A, diag, 2)
    A("s_cmp_eq_u32 s52, 1")
    A("s_cbranch_scc1 L_k2_Y")
    import copy
    def role(tiles, name):
        lq = Q(A, "lgkmcnt", 15)
        accr = {c: ACC + 4 * i for i, c in enumerate(tiles)}
        items = []
        for mu in range(8):
            js = sorted({c - (m - mu) // 8 for c in tiles for m in (mu, mu + 8, mu + 16) if m <= 16})
            for j in js:
                idx = 8 * j - mu
                if idx < -8: continue
                uses = [(c, m) for c in tiles for m in (mu, mu + 8, mu + 16) if m <= 16 and 8 * c - m == idx]
                if mu == 0: uses += [(c, 32) for c in tiles if c >= 4 and 8 * c - 32 == idx]
                items.append((("B", idx), uses))
        have = {it[0][1] for it in items}
        for c in tiles:
            if c >= 4 and (8 * c - 32) not in have: items.append((("B", 8 * c - 32), [(c, 32)]))
        nnear = len(items)
        for blk in range(12):
            uses = [(c, 2 * c - blk) for c in tiles if 3 <= 2 * c - blk <= 8]
            if uses: items.append((("V4", blk), uses))
        for blk in range(4):
            uses = [(c, c - blk) for c in tiles if 4 <= c - blk <= 7]
            if uses: items.append((("V8", blk), uses))
        def load(i):
            kind, x = items[i][0]; rg = BR + 4 * (i % NB)
            if kind == "B":
                A(f"ds_read_b128 v[{rg}:{rg+3}], {ub(x)}"); lq.issue(i)
            else:
                sg = 4 if kind == "V4" else 8
                for rho in range(2):
                    off = (0 if sg == 4 else W_O[2]) + 2 * sg * (32 * x + 4 * rho)
                    A(f"ds_read_b64_tr_b16 v[{rg+2*rho}:{rg+2*rho+1}], v{16 if sg == 4 else 17} offset:{off}"); lq.issue(i)
        D = opt.get("k2_D", 6)
        started = set(); nmf = 0; bar_at = opt.get("k2_bar", 40); barred = False
        nl = 0
        def pumpto(n):
            nonlocal nl, barred
            while nl < min(n, len(items)):
                if nl >= nnear and not barred:
                    A("s_barrier"); barred = True
                load(nl); nl += 1
        pumpto(D)
        for c in tiles:
            e = EU + 4 * tiles.index(c)
            A(f"ds_read_b64 v[{e}:{e+1}], v18 offset:{UDATA + 2048*c}"); lq.issue()
            A(f"ds_read_b64 v[{e+2}:{e+3}], v19 offset:{UDATA + 2048*c}"); lq.issue()
        for i, ((kind, x), uses) in enumerate(items):
            rg = BR + 4 * (i % NB)
            lq.wait(i)
            for k, (c, p) in enumerate(uses):
                d = accr[c]
                cc = f"v[{d}:{d+3}]" if c in started else "0"
                started.add(c)
                if kind == "B":
                    ar = FX if p == 32 else NA + 4 * p
                    A(f"v_mfma_f32_16x16x32_bf16 v[{d}:{d+3}], v[{ar}:{ar+3}], v[{rg}:{rg+3}], {cc}")
                else:
                    br = T4 + 4 * (p - 3) if kind == "V4" else T8 + 4 * (p - 4)
                    A(f"v_mfma_f32_16x16x32_bf16 v[{d}:{d+3}], v[{rg}:{rg+3}], v[{br}:{br+3}], {cc}")
                nmf += 1
                if k == 0: pumpto(i + 1 + D)
                if nmf >= bar_at and not barred:
                    A("s_barrier"); barred = True
        print(name, "mfmas", nmf, "loads", len(items))
        stamp(A, diag, 3)
        T = 24
        for c in tiles:
            e = EU + 4 * tiles.index(c); d = accr[c]
            for h_ in range(2):
                A(f"v_lshlrev_b32 v{T+2*h_}, 16, v{e+h_}")
                A(f"v_and_b32 v{T+2*h_+1}, s36, v{e+h_}")
            for j in range(4): A(f"v_mul_f32 v{T+j}, s42, v{T+j}")
            for h_ in range(2):
                A(f"v_cvt_pk_bf16_f32 v{e+h_}, v{T+2*h_}, v{T+2*h_+1}")
                A(f"v_cvt_pk_bf16_f32 v{d+2*h_+1}, v{d+2*h_}, v{d+2*h_+1}")
            for h_ in range(2):
                A(f"v_lshlrev_b32 v{T+2*h_}, 16, v{e+h_}")
                A(f"v_and_b32 v{T+2*h_+1}, s36, v{e+h_}")
                A(f"v_lshlrev_b32 v{d+2*h_}, 16, v{d+2*h_+1}")
                A(f"v_and_b32 v{d+2*h_+1}, s36, v{d+2*h_+1}")
            for h_ in range(2):
                A(f"v_pk_add_f32 v[{d+2*h_}:{d+2*h_+1}], v[{d+2*h_}:{d+2*h_+1}], v[{T+2*h_}:{T+2*h_+1}]")
            for h_ in range(2):
                A(f"v_cvt_pk_bf16_f32 v{d+2*h_+1}, v{d+2*h_}, v{d+2*h_+1}")
                A(f"v_lshlrev_b32 v{T+2*h_}, 16, v{e+2+h_}")
                A(f"v_and_b32 v{T+2*h_+1}, s36, v{e+2+h_}")
            for h_ in range(2):
                A(f"v_lshlrev_b32 v{d+2*h_}, 16, v{d+2*h_+1}")
                A(f"v_and_b32 v{d+2*h_+1}, s36, v{d+2*h_+1}")
            for h_ in range(2):
                A(f"v_pk_add_f32 v[{d+2*h_}:{d+2*h_+1}], v[{d+2*h_}:{d+2*h_+1}], v[{T+2*h_}:{T+2*h_+1}]")
            k = tiles.index(c)
            o = BR + 4 * (k // 2)
            for h_ in range(2):
                A(f"v_cvt_pk_bf16_f32 v{o+2*(k%2)+h_}, v{d+2*h_}, v{d+2*h_+1}")
            last = k == len(tiles) - 1
            if k % 2 == 0 and last:
                A(f"v_mov_b32 v{o+2}, v{o}"); A(f"v_mov_b32 v{o+3}, v{o+1}")
            if k % 2 == 1 or last:
                c0 = tiles[k - k % 2]
                A(f"v_add_u32 v22, {8*c0*HT_STRIDE}, v{21 if k % 2 == 1 else 20}")
                A(f"v_permlane16_swap_b32 v{o}, v{o+2}")
                A(f"v_permlane16_swap_b32 v{o+1}, v{o+3}")
                A(f"global_store_dwordx4 v22, v[{o}:{o+3}], s[4:5] {st_h}")
        A("s_branch L_k2_fin")
    role([0, 1, 2, 3, 4], "X")
    A("L_k2_Y:")
    role([5, 6, 7], "Y")
    A("L_k2_aux:")
    A("s_setprio 2")
    A("s_sub_u32 s45, s26, 4")
    A("s_mov_b32 s37, 0x05040100")
    A("s_mov_b32 s38, 0x07060302")
    A("v_lshlrev_b32 v11, 4, v1")
    pc_addr(A, "L_band", "L_k2_pc", 12, 11, s0=46)
    for w in range(4):
        A(f"global_load_dwordx4 v[{32+4*w}:{35+4*w}], v[12:13], off offset:{1024*w}")
    A("s_mov_b32 s35, 0x20000")
    A("s_cmp_ge_u32 s2, 112")
    A("s_cbranch_scc1 L_k2_w2ld")
    A("s_mov_b32 s44, 1")
    A("s_and_b32 s46, s45, 1")
    A("s_cmp_eq_u32 s46, 0")
    A("s_cselect_b32 s32, s20, s22")
    A("s_cselect_b32 s33, s21, s23")
    A(f"s_mov_b32 s34, {512*3584}")
    A("s_lshr_b32 s47, s2, 3")
    A("s_and_b32 s48, s2, 7")
    A("s_lshr_b32 s49, s45, 1")
    A("s_lshl_b32 s48, s48, 1")
    A("s_add_u32 s48, s48, s49")
    A(f"s_mul_i32 s49, s48, {32*3584}")
    A("s_lshl_b32 s50, s47, 8")
    A("s_add_u32 s49, s49, s50")
    A(f"v_mul_u32_u24 v2, {8*3584}, v9")
    A("v_lshl_add_u32 v2, v8, 4, v2")
    for e in range(8):
        if e and e % 2 == 0: A("s_add_u32 s49, s49, 7168")
        A(f"buffer_load_dwordx4 v[{128+4*e}:{131+4*e}], v2, s[32:35], s49 offen offset:{3584*(e%2)}")
    A("s_branch L_k2_aux2")
    A("L_k2_w2ld:")
    A("s_mov_b32 s44, 2")
    A("s_sub_u32 s46, s2, 112")
    A("s_cmp_ge_u32 s46, 112")
    A("s_cselect_b32 s44, 3, s44")
    A("s_min_u32 s46, s46, 111")
    A("s_mov_b32 s32, s24")
    A("s_mov_b32 s33, s25")
    A(f"s_mov_b32 s34, {1792*1024}")
    A("s_and_b32 s48, s46, 1")
    A("s_lshl_b32 s48, s48, 2")
    A("s_add_u32 s48, s48, s45")
    A("s_lshr_b32 s46, s46, 1")
    A("s_lshr_b32 s47, s46, 2")
    A("s_lshl_b32 s47, s47, 7")
    A("s_and_b32 s49, s46, 3")
    A("s_lshl_b32 s49, s49, 1")
    A("s_add_u32 s47, s47, s49")
    A("s_lshl_b32 s47, s47, 10")
    A("s_lshl_b32 s49, s48, 7")
    A("s_add_u32 s47, s47, s49")
    A("v_lshrrev_b32 v2, 5, v1")
    A("v_lshlrev_b32 v2, 10, v2")
    A("v_bfe_u32 v3, v1, 4, 1")
    A("v_lshl_add_u32 v2, v3, 16, v2")
    A("v_lshl_add_u32 v2, v8, 3, v2")
    for e in range(8):
        if e: A("s_add_u32 s47, s47, 8192")
        A(f"buffer_load_dwordx2 v[{128+2*e}:{129+2*e}], v2, s[32:35], s47 offen")
    A("L_k2_aux2:")
    A("v_mov_b32 v12, 0\nv_mov_b32 v13, 0\nv_mov_b32 v14, 0\nv_mov_b32 v15, 0")
    A("v_and_b32 v2, 255, v0")
    A("v_min_u32 v3, 207, v2")
    A("v_cmp_lt_u32 vcc, 191, v3")
    A("v_lshlrev_b32 v3, 4, v3")
    A("v_add_u32 v11, 16384, v3")
    A("v_cndmask_b32 v3, v3, v11, vcc")
    A("ds_write_b128 v3, v[12:15]")
    A("v_and_b32 v3, 1, v0")
    A("v_bfe_u32 v11, v0, 1, 1")
    A(f"v_mul_u32_u24 v11, {W_CH}, v11")
    A("v_lshl_add_u32 v3, v3, 4, v11")
    for w in range(4): A(f"ds_write_b128 v3, v[12:15] offset:{WL + W_O[w]}")
    A(f"s_mul_i32 s28, s51, {W_CH}")
    A(f"s_add_u32 s28, s28, {WL + 32}")
    A("v_lshlrev_b32 v16, 5, v8")
    A("v_lshl_add_u32 v16, v9, 3, v16")
    A("v_add_u32 v16, s28, v16")
    stamp(A, diag, 1)
    A("s_barrier")
    A("s_waitcnt vmcnt(8) lgkmcnt(0)")
    A("s_barrier")
    stamp(A, diag, 2)
    A("s_cmp_eq_u32 s52, 1")
    A("s_cbranch_scc1 L_k2_winY")
    def windows(tiles, nw):
        for i, c in enumerate(tiles):
            A(f"ds_read_b128 v[{48+4*i}:{51+4*i}], {ub(8*c)}")
        jobs = [(i, c, w) for i, c in enumerate(tiles) for w in range(nw)]
        def fin(k):
            i, c, w = jobs[k]; d = 64 + 4 * k
            A(f"v_cvt_pk_bf16_f32 v{d}, v{d}, v{d+1}")
            A(f"v_cvt_pk_bf16_f32 v{d+1}, v{d+2}, v{d+3}")
            A(f"ds_write_b64 v16, v[{d}:{d+1}] offset:{W_O[w] + 512*c}")
        A("s_waitcnt lgkmcnt(0)")
        for k, (i, c, w) in enumerate(jobs):
            d = 64 + 4 * k
            A(f"v_mfma_f32_16x16x32_bf16 v[{d}:{d+3}], v[{32+4*w}:{35+4*w}], v[{48+4*i}:{51+4*i}], 0")
            if k >= 3: fin(k - 3)
        for k in range(max(0, len(jobs) - 3), len(jobs)): fin(k)
    windows([4, 5], 2)
    A("s_branch L_k2_wind")
    A("L_k2_winY:")
    windows([0, 1, 2, 3], 4)
    A("L_k2_wind:")
    A("s_waitcnt lgkmcnt(0)")
    A("s_setprio 0")
    A("s_barrier")
    stamp(A, diag, 3)
    A("s_cmp_eq_u32 s44, 2")
    A("s_cbranch_scc1 L_k2_w2work")
    A("s_cmp_eq_u32 s44, 3")
    A("s_cbranch_scc1 L_k2_fin")
    A("s_lshr_b32 s49, s48, 1")
    A("s_mul_i32 s49, s49, 28672")
    A("s_and_b32 s50, s48, 1")
    A("s_lshl_b32 s50, s50, 11")
    A("s_add_u32 s49, s49, s50")
    A("s_lshl_b32 s50, s46, 10")
    A("s_add_u32 s49, s49, s50")
    A(f"s_add_u32 s49, s49, {W13_OFF}")
    A("v_lshl_add_u32 v2, v1, 4, s49")
    for j in range(4): A(f"v_mov_b32 v{4+j}, 0x3f803f80")
    A("s_lshl_b32 s51, s47, 3")
    A("s_waitcnt vmcnt(0)")
    for c in range(8):
        o = 16 + 4 * c
        A("s_mul_i32 s52, s51, 9363")
        A("s_lshr_b32 s52, s52, 16")
        A(f"s_mul_i32 s53, s52, {229376 - 7*4096}")
        A("s_lshl_b32 s54, s51, 12")
        A("s_add_u32 s53, s53, s54")
        A("v_add_u32 v3, s53, v2")
        for j in range(4):
            A(f"v_perm_b32 v{o+j}, v{128+4*(2*j+1)+(c>>1)}, v{128+4*(2*j)+(c>>1)}, s{38 if c & 1 else 37}")
        A(f"global_store_dwordx4 v3, v[{o}:{o+3}], s[4:5] {st_w}")
        A(f"v_mfma_f32_16x16x32_bf16 v[{64+4*c}:{67+4*c}], v[4:7], v[{o}:{o+3}], 0")
        A("s_add_u32 s51, s51, 1")
    A("s_lshl_b32 s49, s47, 14")
    A("s_lshl_b32 s50, s46, 10")
    A("s_add_u32 s49, s49, s50")
    A("s_lshr_b32 s50, s48, 2")
    A("s_lshl_b32 s50, s50, 8")
    A("s_add_u32 s49, s49, s50")
    A("s_and_b32 s50, s48, 3")
    A("s_lshl_b32 s50, s50, 2")
    A("s_add_u32 s49, s49, s50")
    A(f"s_add_u32 s49, s49, {CS_OFF}")
    A("v_lshlrev_b32 v3, 4, v8")
    A("v_lshl_add_u32 v3, v9, 12, v3")
    A("v_add_u32 v3, s49, v3")
    for q in range(1, 4):
        A(f"v_cmp_eq_u32 vcc, {q}, v9")
        A(f"v_cndmask_b32 v64, v64, v{64+8*q}, vcc")
        A(f"v_cndmask_b32 v68, v68, v{68+8*q}, vcc")
    for k_, rg in enumerate((64, 68)):
        A(f"v_cvt_pk_bf16_f32 v10, v{rg}, v{rg}")
        A("v_lshlrev_b32 v10, 16, v10")
        A(f"v_sub_f32 v10, v{rg}, v10")
        A(f"v_cvt_pk_bf16_f32 v{11+k_}, v{rg}, v10")
        A(f"global_store_dword v3, v{11+k_}, s[4:5] offset:{2048*k_} {st_w}")
    A("s_branch L_k2_fin")
    A("L_k2_w2work:")
    A(f"s_mul_i32 s49, s48, {56*4096}")
    A("s_lshl_b32 s50, s46, 12")
    A("s_add_u32 s49, s49, s50")
    A(f"s_add_u32 s49, s49, {W2_OFF}")
    A("v_lshl_add_u32 v2, v1, 4, s49")
    A("s_waitcnt vmcnt(0)")
    for dt in range(4):
        o = 16 + 4 * dt
        for j in range(4):
            A(f"v_perm_b32 v{o+j}, v{128+2*(2*j+1)+(dt>>1)}, v{128+2*(2*j)+(dt>>1)}, s{38 if dt & 1 else 37}")
        A(f"global_store_dwordx4 v2, v[{o}:{o+3}], s[4:5] offset:{1024*dt} {st_w}")
    A("L_k2_fin:")
    if diag:
        A("s_and_b32 s68, s26, 3")
        A(f"s_cmp_lg_u32 s68, {opt.get('k2_stampwave', 0)}")
        A("s_cbranch_scc1 L_k2_end")
        stamp(A, diag, 4)
        A("s_waitcnt vmcnt(0)")
        stamp(A, diag, 5)
        stamp_flush(A, diag, 2, 6, 4, 60, wave_sreg=26)
    A("L_k2_end:")
    A("s_endpgm")
    lines = A.finish()
    lines.append(".p2align 6")
    lines.append("L_band:")
    for h in (2, 1, 4, 3):
        for l in range(64):
            b, kq = l & 15, l >> 4
            lines.append(".short " + ", ".join("0x3f80" if abs(8 * kq + e - b - 4) <= h else "0" for e in range(8)))
    return lines, kernel_desc("k2_kernel", 232, 102, 232), f"; @launch kernel=k2_kernel grid=(256,1,1) block=(512,1,1) lds={K2_LDS}"
```

```python
from asmlib import *
from layout import *
from k1 import stamp, stamp_flush, probe_wait

SLOT = 45056
CSL3 = 3 * SLOT
HTL  = CSL3 + 14336
K3_LDS = HTL + 8192
LOG2E = 0x3fb8aa3b

class Q:
    def __init__(self, A, name, mx):
        self.A, self.name, self.mx = A, name, mx
        self.n = 0; self.done = 0; self.tag = {}
    def issue(self, tag=None):
        self.n += 1
        if tag is not None: self.tag[tag] = self.n
    def wait(self, tag):
        k = self.tag[tag]
        if k <= self.done: return
        c = min(self.n - k, self.mx)
        self.A(f"s_waitcnt {self.name}({c})")
        self.done = self.n - c
    def wait_all(self):
        if self.done < self.n: self.A(f"s_waitcnt {self.name}(0)")
        self.done = self.n

def gen_k3(opt):
    A = Asm()
    diag = opt.get("diag", False)
    X, G = opt.get("k3_X", 6), opt.get("k3_G", 4)
    RA = 14
    ACC = 0 + 16
    AR  = 128
    BR  = 184
    GS  = 200
    ONES = 216
    VA  = 220
    VB  = 223
    VL  = 229
    TMP = 230
    def acc(T, mat, n): return ACC + 16 * T + 8 * mat + 4 * n
    vm = Q(A, "vmcnt", 63); lg = Q(A, "lgkmcnt", 15)
    A(kernel_header("k3_kernel"))
    A("s_cmp_ge_u32 s2, 256")
    A("s_cbranch_scc1 L_k3_end")
    stamp(A, diag, 0)
    A("s_load_dwordx2 s[4:5], s[0:1], 104")
    A("s_load_dwordx2 s[6:7], s[0:1], 88")
    if opt.get("probe") == "k3":
        A("s_waitcnt lgkmcnt(0)")
        probe_wait(A, opt, "k3", 4, "L_k3_probe")
    A("v_lshrrev_b32 v1, 6, v0")
    A("s_and_b32 s20, s2, 7")
    A("v_readfirstlane_b32 s12, v1")
    A("v_and_b32 v1, 63, v0")
    A("s_lshr_b32 s21, s2, 3")
    A("s_lshr_b32 s13, s20, 2")
    A("s_lshl_b32 s13, s13, 3")
    A("s_and_b32 s22, s21, 7")
    A("s_add_u32 s13, s13, s22")
    A("s_and_b32 s14, s20, 3")
    A("s_lshl_b32 s14, s14, 2")
    A("s_lshr_b32 s22, s21, 3")
    A("s_add_u32 s14, s14, s22")
    A("s_lshl_b32 s15, s20, 2")
    A("s_and_b32 s22, s21, 3")
    A("s_add_u32 s15, s15, s22")
    A("s_lshr_b32 s16, s21, 2")
    A(f"v_lshlrev_b32 v{VL}, 4, v1")
    A("s_mul_i32 s17, s14, 229376")
    A("s_mul_i32 s19, s12, 7168")
    A("s_add_u32 s17, s17, s19")
    A(f"s_add_u32 s17, s17, {W13_OFF}")
    A("s_lshl_b32 s18, s13, 2")
    A("s_add_u32 s18, s18, s12")
    A(f"s_mul_i32 s18, s18, {HT_STRIDE}")
    A(f"s_add_u32 s18, s18, {HT_OFF}")
    A("s_lshl_b32 s23, s12, 12")
    A("s_add_u32 s23, s23, 28672")
    rot = opt.get("k3_rot", False)
    A("s_and_b32 s44, s21, 7")
    A("s_lshr_b32 s22, s21, 3")
    A("s_lshl_b32 s22, s22, 1")
    A("s_add_u32 s44, s44, s22")
    A("s_and_b32 s44, s44, 7" if rot else "s_mov_b32 s44, 0")
    A("s_mov_b32 s45, s17")
    A("s_mov_b32 s46, s18")
    A(f"s_mov_b32 s10, {WS_USED}")
    A("s_mov_b32 s11, 0x20000")
    A("s_waitcnt lgkmcnt(0)")
    A("s_mov_b32 s8, s4")
    A("s_mov_b32 s9, s5")
    def dma_ops(st):
        sl = (st % 3) * SLOT
        o = []
        o.append(("s_lshl_b32 s18, s44, 12", False))
        o.append((f"s_add_u32 m0, s23, {sl}", False))
        o.append(("s_add_u32 s18, s18, s46", False))
        for k in range(4): o.append((f"buffer_load_dwordx4 v{VL}, s[8:11], s18 offen offset:{1024*k} lds", True))
        o.append(("s_mul_i32 s17, s44, 28672", False))
        o.append((f"s_add_u32 m0, s19, {sl}", False))
        o.append(("s_add_u32 s17, s17, s45", False))
        for k in range(4): o.append((f"buffer_load_dwordx4 v{VL}, s[8:11], s17 offen offset:{1024*k} lds", True))
        o.append((f"s_add_u32 m0, s19, {sl + 4096}", False))
        o.append(("s_add_u32 s17, s17, 4096", False))
        for k in range(3): o.append((f"buffer_load_dwordx4 v{VL}, s[8:11], s17 offen offset:{1024*k} lds", True))
        o.append(("s_add_u32 s44, s44, 1", False))
        o.append(("s_and_b32 s44, s44, 7", False))
        return o
    def emit(op, tag=None):
        A(op[0])
        if op[1]: vm.issue(tag)
    side = []
    side2 = []
    for op in dma_ops(0): emit(op, ("st", 0))
    side.extend((op, ("st", 1)) for op in dma_ops(1))
    side.extend((op, ("st", 2)) for op in dma_ops(2))
    def pop_vm(lst):
        while lst:
            op, tag = lst.pop(0); emit(op, tag)
            if op[1]: break
        while lst and not lst[0][0][1] and "m0" not in lst[0][0][0] and not any(x[0][1] for x in lst):
            op, tag = lst.pop(0); emit(op, tag)
    for _ in range(opt.get("k3_npre", 4)): pop_vm(side)
    A("s_min_u32 s24, s12, 2")
    A("s_lshl_b32 s24, s24, 12")
    A("s_cmp_eq_u32 s12, 3")
    A("s_cselect_b32 s24, 10240, s24")
    A(f"s_add_u32 s49, s24, {CSL3}")
    A("s_mul_i32 s48, s14, 14336")
    A("s_add_u32 s48, s48, s24")
    A(f"s_add_u32 s48, s48, {CS_OFF}")
    auxops = [("s_mov_b32 m0, s49", False)]
    for k in range(4): auxops.append((f"buffer_load_dwordx4 v{VL}, s[8:11], s48 offen offset:{1024*k} lds", True))
    A("s_lshl_b32 s24, s12, 11")
    A(f"s_add_u32 s51, s24, {HTL}")
    A("s_lshl_b32 s25, s15, 1")
    A("s_lshr_b32 s26, s12, 1")
    A("s_add_u32 s25, s25, s26")
    A(f"s_mul_i32 s25, s25, {HT_STRIDE}")
    A("s_lshl_b32 s26, s16, 12")
    A("s_add_u32 s25, s25, s26")
    A("s_and_b32 s26, s12, 1")
    A("s_lshl_b32 s26, s26, 11")
    A("s_add_u32 s25, s25, s26")
    A(f"s_add_u32 s50, s25, {HT_OFF}")
    auxops.append(("s_mov_b32 m0, s51", False))
    for k in range(2): auxops.append((f"buffer_load_dwordx4 v{VL}, s[8:11], s50 offen offset:{1024*k} lds", True))
    for sl in range(3): A(f"v_add_u32 v{VA+sl}, {sl*SLOT}, v{VL}")
    A("v_lshrrev_b32 v2, 4, v1")
    A("v_bfe_u32 v3, v1, 2, 2")
    A("v_lshl_add_u32 v3, v2, 3, v3")
    A("v_lshlrev_b32 v3, 6, v3")
    A("v_and_b32 v4, 3, v1")
    A("v_lshl_add_u32 v3, v4, 3, v3")
    A("v_and_b32 v4, 1, v2")
    A("v_lshl_add_u32 v3, v4, 5, v3")
    A("v_add_u32 v3, s23, v3")
    A("v_xor_b32 v4, 32, v3")
    for sl in range(3):
        A(f"v_add_u32 v{VB+2*sl}, {sl*SLOT}, v3")
        A(f"v_add_u32 v{VB+2*sl+1}, {sl*SLOT}, v4")
    for j in range(4): A(f"v_mov_b32 v{ONES+j}, 0x3f803f80")
    A("v_and_b32 v4, 3, v1")
    A("v_cmp_eq_u32 s[30:31], 1, v4")
    A("v_cmp_eq_u32 s[32:33], 2, v4")
    A("v_cmp_eq_u32 s[34:35], 3, v4")
    A("v_bfe_u32 v4, v1, 2, 2")
    A("v_cmp_eq_u32 s[36:37], v2, v4")
    A("s_mov_b32 s38, 0xffff0000")
    A("s_mul_i32 s47, s16, 7")
    A("s_and_b32 s22, s21, 3")
    A("s_mul_i32 s22, s22, 14")
    A("s_add_u32 s47, s47, s22")
    A("s_lshr_b32 s47, s47, 2")
    if not rot: A("s_mov_b32 s47, 0")
    A("s_mul_i32 s22, s12, 14")
    A("s_add_u32 s47, s47, s22")
    A("s_cmp_ge_u32 s47, 56")
    A("s_cselect_b32 s22, 56, 0")
    A("s_sub_u32 s47, s47, s22")
    A(f"s_mul_i32 s28, s16, {56*4096}")
    A(f"s_add_u32 s28, s28, {W2_OFF}")
    A(f"s_add_u32 s29, s28, {56*4096}")
    A("s_lshl_b32 s27, s47, 12")
    A("s_add_u32 s27, s27, s28")
    w2ops = []
    for f in range(56):
        w2ops.append((f"buffer_load_dwordx4 a[{4*f}:{4*f+3}], v{VL}, s[8:11], s27 offen offset:{1024*(f%4)}", True))
        if f % 4 == 3:
            w2ops.append(("s_add_u32 s27, s27, 4096", False))
            w2ops.append(("s_cmp_ge_u32 s27, s29", False))
            w2ops.append(("s_cselect_b32 s27, s28, s27", False))
    NF = 16 * 14
    def rdA(f):
        sg, r_ = divmod(f, 14); st = sg >> 1
        reg = AR + 4 * (f % RA)
        A(f"ds_read_b128 v[{reg}:{reg+3}], v{VA + st % 3} offset:{(r_>>1)*4096 + (sg&1)*2048 + (r_&1)*1024}")
        lg.issue(("A", f))
    def rdB(sg, n, rho):
        st = sg >> 1
        reg = BR + 8 * (sg & 1) + 4 * n + 2 * rho
        A(f"ds_read_b64_tr_b16 v[{reg}:{reg+1}], v{VB + 2*(st % 3) + n} offset:{(sg&1)*2048 + rho*256}")
        lg.issue(("B", sg, n))
    def rdC(f):
        reg = AR + 4 * ((NF + f) % RA)
        A(f"ds_read_b128 v[{reg}:{reg+3}], v{TMP} offset:{1024*f}")
        lg.issue(("A", NF + f))
    A(f"v_add_u32 v{TMP}, {CSL3}, v{VL}")
    if not opt.get("k3_now2"): side2.extend((op, "w2") for op in w2ops)
    pend = []
    def stage_open(st):
        lg.wait_all()
        while any(x[1] == ("st", st) for x in side): pop_vm(side)
        vm.wait(("st", st))
        if st == 7: vm.wait("aux")
        A("s_barrier")
        if opt.get("k3_ststamp") and st >= 1: stamp(A, diag, 8 + st)
        if st >= 1 and st + 2 < 8:
            if opt.get("k3_nodma"): vm.tag[("st", st + 2)] = 0
            else: side.extend((op, ("st", st + 2)) for op in dma_ops(st + 2))
        if st == 5: side.extend((op, "aux") for op in auxops)
        for n in range(2):
            for rho in range(2): pend.append((14 * (2 * st - 1), lambda n=n, rho=rho: rdB(2 * st, n, rho)))
        for k in range(28):
            pend.append((0, lambda k=k: rdA(28 * st + k)))
            if k == 8:
                for n in range(2):
                    for rho in range(2): pend.append((14 * (2 * st), lambda n=n, rho=rho: rdB(2 * st + 1, n, rho)))
        if st == 7:
            for k in range(14): pend.append((0, lambda k=k: rdC(k)))
    issuedA = [0]
    def pump(f_cur, maxn):
        k = 0
        while pend and k < maxn:
            nA = sum(1 for t in lg.tag if t[0] == "A")
            if nA - f_cur >= X + G + 1: break
            if pend[0][0] > f_cur: break
            pend.pop(0)[1](); k += 1
    credit = [0.0]
    rates = opt.get("k3_rates", [22, 15, 15, 15, 15, 15, 15, 15])
    def pace(f):
        credit[0] += rates[min(f // 28, 7)] / 56.0
        if credit[0] >= 1.0:
            if side: pop_vm(side); credit[0] -= 1.0
            elif side2 and f >= 28: pop_vm(side2); credit[0] -= 1.0
            else: credit[0] = 1.0
    stage_open(0)
    if diag: stamp(A, diag, 1)
    pump(0, 4 + X)
    fin = []
    for f in range(NF):
        sg, r_ = divmod(f, 14); T, mat = divmod(r_, 2)
        if (f + X) % 28 == 0 and f + X < NF:
            assert not pend, (f, len(pend))
            stage_open((f + X) // 28)
        b0 = BR + 8 * (sg & 1)
        if r_ == 0:
            lg.wait(("B", sg, 1))
            for n in range(2):
                c = "0" if sg == 0 else f"v[{GS+4*n}:{GS+4*n+3}]"
                A(f"v_mfma_f32_16x16x32_bf16 v[{GS+4*n}:{GS+4*n+3}], v[{b0+4*n}:{b0+4*n+3}], v[{b0+4*n}:{b0+4*n+3}], {c}")
                c = "0" if sg == 0 else f"v[{GS+8+4*n}:{GS+8+4*n+3}]"
                A(f"v_mfma_f32_16x16x32_bf16 v[{GS+8+4*n}:{GS+8+4*n+3}], v[{ONES}:{ONES+3}], v[{b0+4*n}:{b0+4*n+3}], {c}")
            if sg == 15:
                t = TMP + 2
                for n in range(2):
                    g_ = GS + 4 * n
                    fin += [f"v_cndmask_b32 v{g_}, v{g_}, v{g_+1}, s[30:31]", f"v_cndmask_b32 v{g_}, v{g_}, v{g_+2}, s[32:33]",
                            f"v_cndmask_b32 v{g_}, v{g_}, v{g_+3}, s[34:35]", f"v_cndmask_b32 v{g_}, 0, v{g_}, s[36:37]",
                            f"v_mov_b32 v{g_+1}, v{g_}"]
                fin += [f"v_permlane16_swap_b32 v{GS}, v{GS+1}", f"v_permlane16_swap_b32 v{GS+4}, v{GS+5}",
                        f"v_add_f32 v{GS}, v{GS}, v{GS+1}", f"v_add_f32 v{GS+4}, v{GS+4}, v{GS+5}",
                        f"v_mov_b32 v{GS+1}, v{GS}", f"v_mov_b32 v{GS+5}, v{GS+4}",
                        f"v_mul_f32 v{GS+8}, 0x3b000000, v{GS+8}", f"v_mul_f32 v{GS+12}, 0x3b000000, v{GS+12}",
                        f"v_permlane32_swap_b32 v{GS}, v{GS+1}", f"v_permlane32_swap_b32 v{GS+4}, v{GS+5}",
                        f"v_add_f32 v{GS}, v{GS}, v{GS+1}", f"v_add_f32 v{GS+4}, v{GS+4}, v{GS+5}",
                        f"v_cvt_pk_bf16_f32 v{t}, -v{GS+8}, -v{GS+8}", f"v_cvt_pk_bf16_f32 v{t+4}, -v{GS+12}, -v{GS+12}",
                        f"v_mul_f32 v{GS}, 0x3b000000, v{GS}", f"v_mul_f32 v{GS+4}, 0x3b000000, v{GS+4}"]
                fin += [f"v_mov_b32 v{t+j}, v{t}" for j in (1, 2, 3)] + [f"v_mov_b32 v{t+4+j}, v{t+4}" for j in (1, 2, 3)]
                fin += [f"v_fma_f32 v{GS}, -v{GS+8}, v{GS+8}, v{GS}", f"v_fma_f32 v{GS+4}, -v{GS+12}, v{GS+12}, v{GS+4}",
                        f"v_max_f32 v{GS}, 0, v{GS}", f"v_max_f32 v{GS+4}, 0, v{GS+4}",
                        f"v_cvt_pk_bf16_f32 v{GS+1}, v{GS}, v{GS+4}",
                        f"v_lshlrev_b32 v{GS}, 16, v{GS+1}", f"v_and_b32 v{GS+4}, s38, v{GS+1}",
                        f"v_add_f32 v{GS}, 0x3727c5ac, v{GS}", f"v_add_f32 v{GS+4}, 0x3727c5ac, v{GS+4}",
                        f"v_cvt_pk_bf16_f32 v{GS+1}, v{GS}, v{GS+4}",
                        f"v_lshlrev_b32 v{GS}, 16, v{GS+1}", f"v_and_b32 v{GS+4}, s38, v{GS+1}",
                        f"v_sqrt_f32 v{GS}, v{GS}", f"v_sqrt_f32 v{GS+4}, v{GS+4}",
                        f"v_cvt_pk_bf16_f32 v{GS+1}, v{GS}, v{GS+4}",
                        f"v_lshlrev_b32 v{GS}, 16, v{GS+1}", f"v_and_b32 v{GS+4}, s38, v{GS+1}",
                        f"v_rcp_f32 v{GS+2}, v{GS}", f"v_rcp_f32 v{GS+6}, v{GS+4}",
                        f"v_mul_f32 v{GS}, v{GS}, v{GS}", f"v_mul_f32 v{GS+4}, v{GS+4}, v{GS+4}",
                        f"v_mul_f32 v{GS+2}, {0x80000000 | LOG2E:#x}, v{GS+2}", f"v_mul_f32 v{GS+6}, {0x80000000 | LOG2E:#x}, v{GS+6}"]
        lg.wait(("A", f))
        ar = AR + 4 * (f % RA)
        for n in range(2):
            d = acc(T, mat, n)
            c = "0" if sg == 0 else f"v[{d}:{d+3}]"
            A(f"v_mfma_f32_16x16x32_bf16 v[{d}:{d+3}], v[{ar}:{ar+3}], v[{b0+4*n}:{b0+4*n+3}], {c}")
            pump(f, 1)
            pace(f)
            if fin and r_ >= 2:
                for _ in range(2):
                    if fin: A(fin.pop(0))
    assert not side, len(side)
    BX = TMP + 2
    nb = sum(1 for x in fin if f"v{BX}" in x or f"v{BX+4}" in x)
    while any((f"v_mov_b32 v{BX+j}," in x) for x in fin for j in range(8)): A(fin.pop(0))
    for f in range(14):
        T, mat = divmod(f, 2)
        pump(NF + f, 2)
        lg.wait(("A", NF + f))
        ar = AR + 4 * ((NF + f) % RA)
        for n in range(2):
            d = acc(T, mat, n)
            A(f"v_mfma_f32_16x16x32_bf16 v[{d}:{d+3}], v[{ar}:{ar+3}], v[{BX+4*n}:{BX+4*n+3}], v[{d}:{d+3}]")
            if fin: A(fin.pop(0))
            pace(NF - 1)
    while fin: A(fin.pop(0))
    if diag: stamp(A, diag, 2)
    A("s_lshl_b32 s24, s13, 3")
    A("s_lshl_b32 s25, s12, 1")
    A("s_add_u32 s24, s24, s25")
    A(f"s_mul_i32 s24, s24, {HID_STRIDE}")
    A(f"s_mul_i32 s25, s14, {7*512}")
    A("s_add_u32 s24, s24, s25")
    A(f"s_add_u32 s24, s24, {HID_OFF}")
    A("v_bfe_u32 v2, v1, 4, 1")
    A(f"v_mul_u32_u24 v2, {HID_STRIDE}, v2")
    A("v_lshrrev_b32 v3, 5, v1")
    A("v_lshl_add_u32 v2, v3, 8, v2")
    A("v_and_b32 v3, 15, v1")
    A("v_lshl_add_u32 v2, v3, 4, v2")
    E = AR
    for T in range(7):
        o = E + 32 + 4 * (T & 1)
        for n in range(2):
            g_, u_ = acc(T, 0, n), acc(T, 1, n); e = E + 4 * n
            for h_ in range(2):
                A(f"v_pk_mul_f32 v[{e+2*h_}:{e+2*h_+1}], v[{g_+2*h_}:{g_+2*h_+1}], v[{GS+4*n+2}:{GS+4*n+3}] op_sel:[0,0] op_sel_hi:[1,0]")
        for n in range(2):
            g_, u_ = acc(T, 0, n), acc(T, 1, n); e = E + 4 * n
            for j in range(4): A(f"v_exp_f32 v{e+j}, v{e+j}")
            for h_ in range(2):
                A(f"v_pk_mul_f32 v[{g_+2*h_}:{g_+2*h_+1}], v[{g_+2*h_}:{g_+2*h_+1}], v[{u_+2*h_}:{u_+2*h_+1}]")
        for n in range(2):
            e = E + 4 * n
            for h_ in range(2):
                A(f"v_pk_fma_f32 v[{e+2*h_}:{e+2*h_+1}], v[{e+2*h_}:{e+2*h_+1}], v[{GS+4*n}:{GS+4*n+1}], v[{GS+4*n}:{GS+4*n+1}] op_sel:[0,0,0] op_sel_hi:[1,0,0]")
        for n in range(2):
            e = E + 4 * n
            for j in range(4): A(f"v_rcp_f32 v{e+j}, v{e+j}")
        for n in range(2):
            g_ = acc(T, 0, n); e = E + 4 * n
            for h_ in range(2):
                A(f"v_pk_mul_f32 v[{g_+2*h_}:{g_+2*h_+1}], v[{g_+2*h_}:{g_+2*h_+1}], v[{e+2*h_}:{e+2*h_+1}]")
        for n in range(2):
            g_ = acc(T, 0, n)
            for h_ in range(2):
                A(f"v_cvt_pk_bf16_f32 v{o+2*n+h_}, v{g_+2*h_}, v{g_+2*h_+1}")
        A(f"v_permlane16_swap_b32 v{o}, v{o+2}")
        A(f"v_permlane16_swap_b32 v{o+1}, v{o+3}")
        A(f"buffer_store_dwordx4 v[{o}:{o+3}], v2, s[8:11], s24 offen offset:{512*T} sc1"); vm.issue("hst")
        if T < 6:
            for _ in range(opt.get("k3_epw2", 3)): pop_vm(side2)
    print("w2 loads left after epilogue:", sum(1 for x in side2 if x[0][1]))
    while side2: pop_vm(side2)
    if diag: stamp(A, diag, 3)
    vm.wait("hst")
    A("s_barrier")
    if diag: stamp(A, diag, 4)
    A("s_cmp_lg_u32 s12, 0")
    A("s_cbranch_scc1 L_k3_synced")
    A("s_mov_b64 exec, 1")
    A("s_lshl_b32 s24, s13, 10")
    A(f"s_add_u32 s24, s24, {FLAG_OFF}")
    A("v_mov_b32 v2, s24")
    A("v_mov_b32 v3, 1")
    A("global_atomic_add v2, v3, s[4:5] sc1")
    A("s_lshr_b32 s24, s15, 1")
    A("s_lshl_b32 s24, s24, 10")
    A(f"s_add_u32 s24, s24, {FLAG_OFF}")
    A("v_mov_b32 v2, s24")
    A("s_mov_b32 s25, 0")
    A("L_k3_poll:")
    A("global_load_dword v3, v2, s[4:5] sc1")
    A("s_add_u32 s25, s25, 1")
    A("s_waitcnt vmcnt(0)")
    A("v_readfirstlane_b32 s26, v3")
    A("s_cmp_ge_u32 s26, 16")
    A("s_cbranch_scc1 L_k3_polled")
    A("s_cmp_lt_u32 s25, 0x100000")
    A("s_cbranch_scc1 L_k3_poll")
    A("L_k3_polled:")
    A("s_mov_b64 exec, -1")
    A("L_k3_synced:")
    A("s_barrier")
    if diag: stamp(A, diag, 5)
    AC2 = 16
    HV = 80
    slots = [HV + 4 * i for i in range(37)] + [256 + 224 + 4 * i for i in range(8)] + [232 + 4 * i for i in range(6)]
    NS = len(slots)
    HA = 228
    hav = [228, 230, 231, 7]
    for nu in range(4):
        A(f"s_add_u32 s24, s12, {nu}")
        A("s_and_b32 s24, s24, 3")
        A("s_lshl_b32 s25, s15, 2")
        A("s_add_u32 s24, s24, s25")
        A(f"s_mul_i32 s24, s24, {HID_STRIDE}")
        A(f"s_add_u32 s24, s24, {HID_OFF}")
        A(f"v_add_u32 v{hav[nu]}, s24, v{VL}")
    A("s_lshl_b32 s40, s47, 10")
    hfl = opt.get("k3_hld", "sc1")
    def ldH(i):
        P, nu = divmod(i, 4)
        rg = slots[i % NS]
        if P and nu == 0:
            A("s_add_u32 s40, s40, 1024")
            A(f"s_cmp_ge_u32 s40, {56*1024}")
            A("s_cselect_b32 s40, 0, s40")
        A(f"buffer_load_dwordx4 {r(rg,4)}, v{hav[nu]}, s[8:11], s40 offen {hfl}"); vm.issue(("H", i))
    nld = opt.get("k3_hpre", 12)
    for i in range(nld): ldH(i)
    A("v_lshrrev_b32 v2, 4, v1")
    A("v_bfe_u32 v3, v1, 2, 2")
    A("v_lshl_add_u32 v3, v2, 4, v3")
    A("v_lshlrev_b32 v3, 6, v3")
    A("v_and_b32 v4, 3, v1")
    A("v_lshl_add_u32 v3, v4, 3, v3")
    A("s_lshr_b32 s24, s12, 1")
    A("s_lshl_b32 s24, s24, 12")
    A("s_and_b32 s25, s12, 1")
    A("s_lshl_b32 s25, s25, 5")
    A("s_add_u32 s24, s24, s25")
    A(f"s_add_u32 s24, s24, {HTL}")
    A("v_add_u32 v3, s24, v3")
    A("v_xor_b32 v4, 32, v3")
    for rho in range(4):
        A(f"ds_read_b64_tr_b16 v[{8+2*rho}:{9+2*rho}], v{3 if rho < 2 else 4} offset:{256*rho}"); lg.issue("h")
    A("s_lshl_b32 s24, s15, 16")
    A("s_lshl_b32 s25, s12, 14")
    A("s_add_u32 s24, s24, s25")
    A("s_lshl_b32 s25, s16, 7")
    A("s_add_u32 s24, s24, s25")
    A("v_and_b32 v5, 15, v1")
    A("v_lshlrev_b32 v5, 10, v5")
    A("v_lshl_add_u32 v5, v2, 5, v5")
    A("v_add_u32 v5, s24, v5")
    for P in range(14):
        for nu in range(4):
            i = 4 * P + nu
            vm.wait(("H", i))
            for dt in range(4):
                d = AC2 + 16 * nu + 4 * dt
                c = "0" if P == 0 else f"v[{d}:{d+3}]"
                w = 4 * (4 * P + dt)
                A(f"v_mfma_f32_16x16x32_bf16 v[{d}:{d+3}], a[{w}:{w+3}], {r(slots[i % NS],4)}, {c}")
                if dt == 0 and nld < 56:
                    assert nld - NS < i
                    ldH(nld); nld += 1
    if diag: stamp(A, diag, 6)
    for nu in range(1, 4):
        A(f"s_add_u32 s24, s12, {nu}")
        A("s_and_b32 s24, s24, 3")
        A("s_mul_i32 s24, s24, 12288")
        A(f"v_add_u32 v6, s24, v{VL}")
        for dt in range(4):
            d = AC2 + 16 * nu + 4 * dt
            A(f"ds_write_b128 v6, v[{d}:{d+3}] offset:{(nu-1)*4096 + dt*1024}"); lg.issue()
    A("s_mul_i32 s24, s12, 12288")
    A(f"v_add_u32 v6, s24, v{VL}")
    lg.wait_all()
    A("s_barrier")
    for k in range(12):
        A(f"ds_read_b128 v[{80+4*k}:{83+4*k}], v6 offset:{1024*k}"); lg.issue(("R", k))
    for j in range(8):
        A(f"v_lshlrev_b32 v{128+2*j}, 16, v{8+j}")
        A(f"v_and_b32 v{129+2*j}, s38, v{8+j}")
    for k in range(12):
        lg.wait(("R", k))
        d = AC2 + 4 * (k % 4)
        for h_ in range(2):
            A(f"v_pk_add_f32 v[{d+2*h_}:{d+2*h_+1}], v[{d+2*h_}:{d+2*h_+1}], v[{80+4*k+2*h_}:{81+4*k+2*h_}]")
    for r_ in range(4):
        for h_ in range(2):
            j = 2 * r_ + h_
            A(f"v_cvt_pk_bf16_f32 v7, v{AC2+8*h_+r_}, v{AC2+8*h_+4+r_}")
            A(f"v_lshlrev_b32 v32, 16, v7")
            A(f"v_and_b32 v33, s38, v7")
            A(f"v_pk_add_f32 v[32:33], v[32:33], v[{128+2*j}:{129+2*j}]")
            if opt.get("perturb") and j == 0:
                A("v_cmp_eq_u32 vcc, 0, v5")
                A(f"v_mov_b32 v34, {float(opt['perturb'])!r}")
                A("v_cndmask_b32 v34, 0, v34, vcc")
                A("v_add_f32 v32, v32, v34")
            A(f"v_cvt_pk_bf16_f32 v{40+j}, v32, v33")
    ost = opt.get("k3_ostore", "")
    A(f"global_store_dwordx4 v5, v[40:43], s[6:7] {ost}")
    A(f"global_store_dwordx4 v5, v[44:47], s[6:7] offset:16 {ost}")
    probe_wait(A, opt, "end", 4, "L_k3_probe2")
    if diag:
        A("s_cmp_lg_u32 s12, 0")
        A("s_cbranch_scc1 L_k3_end")
        stamp(A, diag, 7)
        A("s_waitcnt vmcnt(0)")
        stamp(A, diag, 8)
        stamp_flush(A, diag, 4, 16, 4, 60)
    A("L_k3_end:")
    A("s_endpgm")
    lines = A.finish()
    return [(lines, kernel_desc("k3_kernel", 512, 102, 256), f"; @launch kernel=k3_kernel grid=(256,1,1) block=(256,1,1) lds={K3_LDS}")]
```
